```python
import torch

def _softmax(x, axis=-1):
    return torch.softmax(x, dim=axis)

def _gelu(x):
    return torch.nn.functional.gelu(x, approximate='tanh')

def _silu(x):
    return torch.nn.functional.silu(x)

def _sigmoid(x):
    return torch.sigmoid(x)

def _layernorm(x, axis=-1, eps=1e-05):
    m = x.mean(dim=axis, keepdim=True)
    v = x.var(dim=axis, keepdim=True, unbiased=False)
    return (x - m) / torch.sqrt(v + eps)

def _scatter_add(tgt, idx, src, axis=0):
    return tgt.clone().index_add_(axis, idx, src)

def _segment_sum(src, seg, n):
    out = torch.zeros((n,) + src.shape[1:], dtype=src.dtype)
    return out.index_add_(0, seg, src)

def _pad(x, pw):
    flat = tuple((v for pair in reversed(pw) for v in pair))
    return torch.nn.functional.pad(x, flat)
kernel_name = 'gated_mix__grouped_kv_mqa__memory_aug_recurrent_mem_tr__prompt'

def setup_inputs():

    _w = lambda a: (lambda t: t.to(torch.bfloat16) if t.is_floating_point() else t)(torch.as_tensor(a))

    def _A_setup():
        B, S, D, H = (1, 2048, 640, 32)
        Dh = D // H
        return {'x': _w((lambda *s: torch.randn(*s, dtype=torch.bfloat16) * 0.05)(B, S, D)), 'wq': _w((lambda *s: torch.randn(*s, dtype=torch.bfloat16) * 0.8)(D, H * Dh)), 'wk': _w((lambda *s: torch.randn(*s, dtype=torch.bfloat16) * 0.8)(D, Dh)), 'wv': _w((lambda *s: torch.randn(*s, dtype=torch.bfloat16) * 0.05)(D, Dh)), 'wo': _w((lambda *s: torch.randn(*s, dtype=torch.bfloat16) * 0.05)(H * Dh, D))}
    _A_in = _A_setup()

    def _B_setup():
        B, S, Dm = (1, 2048, 640)
        H, Dh = (32, 128)
        M, seg = (8, 32)
        seg = min(seg, S)
        S = S // seg * seg
        return {'x': _w((lambda *s: torch.randn(*s, dtype=torch.bfloat16) * 0.05)(B, S, Dm)), 'mem0': _w((lambda *s: torch.randn(*s, dtype=torch.bfloat16) * 0.4)(B, M, Dm)), 'Wq': _w((lambda *s: torch.randn(*s, dtype=torch.bfloat16) * 6.4)(Dm, H, Dh) * Dm ** (-0.5)), 'Wk': _w((lambda *s: torch.randn(*s, dtype=torch.bfloat16) * 6.4)(Dm, H, Dh) * Dm ** (-0.5)), 'Wv': _w((lambda *s: torch.randn(*s, dtype=torch.bfloat16) * 0.4)(Dm, H, Dh) * Dm ** (-0.5)), 'Wo': _w((lambda *s: torch.randn(*s, dtype=torch.bfloat16) * 0.4)(H, Dh, Dm) * (H * Dh) ** (-0.5)), 'seg_len': seg}
    _B_in = _B_setup()
    return {'A_x': _A_in['x'], 'A_wq': _A_in['wq'], 'A_wk': _A_in['wk'], 'A_wv': _A_in['wv'], 'A_wo': _A_in['wo'], 'B_x': _B_in['x'], 'B_mem0': _B_in['mem0'], 'B_Wq': _B_in['Wq'], 'B_Wk': _B_in['Wk'], 'B_Wv': _B_in['Wv'], 'B_Wo': _B_in['Wo'], 'B_seg_len': _B_in['seg_len'], 'gate_w': _w((lambda *s: torch.randn(*s, dtype=torch.bfloat16) * 0.05)(640) * 16.0)}

def reference(A_x, A_wq, A_wk, A_wv, A_wo, B_x, B_mem0, B_Wq, B_Wk, B_Wv, B_Wo, B_seg_len, gate_w):

    def _A_ref(x, wq, wk, wv, wo):
        B, S, D = x.shape
        H = 32
        Dh = D // H
        q = (lambda x, *d: x.permute(*d))((x @ wq).reshape(B, S, H, Dh), 0, 2, 1, 3)
        k = x @ wk
        v = x @ wv
        scores = torch.einsum('bhqd,bkd->bhqk', q, k) * Dh ** (-0.5)
        p = _softmax(scores, axis=-1)
        o = torch.einsum('bhqk,bkd->bhqd', p, v)
        return (lambda x, *d: x.permute(*d))(o, 0, 2, 1, 3).reshape(B, S, H * Dh) @ wo

    def _B_ref(x, mem0, Wq, Wk, Wv, Wo, seg_len):
        B, S, Dm = x.shape
        H, Dh = (Wq.shape[1], Wq.shape[2])
        M = mem0.shape[1]
        scale = Dh ** (-0.5)
        n_seg = S // seg_len
        L = M + seg_len
        idx = torch.arange(L)
        mask = (idx[:, None] < M) | (idx[:, None] >= idx[None, :])
        mem = mem0
        outs = []
        for s in range(n_seg):
            xs = x[:, s * seg_len:(s + 1) * seg_len, :].clone()
            h = torch.concatenate([mem, xs], axis=1)
            q = torch.einsum('btd,dhe->bhte', h, Wq)
            k = torch.einsum('btd,dhe->bhte', h, Wk)
            v = torch.einsum('btd,dhe->bhte', h, Wv)
            scores = torch.einsum('bhqe,bhke->bhqk', q, k) * scale
            scores = torch.where(mask[None, None], scores, -1000000000.0)
            p = _softmax(scores, axis=-1)
            o = torch.einsum('bhqk,bhke->bhqe', p, v)
            o = torch.einsum('bhte,hed->btd', o, Wo)
            mem = o[:, :M, :].clone()
            outs.append(o[:, M:, :])
        return torch.concatenate(outs, axis=1)
    x = A_x
    g = _sigmoid((x * gate_w).sum(-1, keepdims=True))
    a = _A_ref(x, A_wq, A_wk, A_wv, A_wo)
    b = _B_ref(x, B_mem0, B_Wq, B_Wk, B_Wv, B_Wo, B_seg_len)
    return g * a + (1 - g) * b
```

```python
from dsl import *
PF=0x0000; RF=0x1000; T1F=0x2000; APF=0x2400; AAF=0x3400; FLAGSZ=0x4000
PROF=0x10000
MEMP=0x100000; MEMS=0x200000; PART=0xB00000
AQ=0x400000; AK=0x700000; AVT=0x720000; AV2=0x740000; AO=0x800000
KM=0x1000000; VM=0x1900000
QX=0x2000000; KX=0x3000000; VX=0x4000000; OB=0x5000000
WS,XS,WA,WB,DB,OS=4,8,12,16,20,24
sW,sB,sSpin=28,29,30
PT=64
def ptr(i): return PT+2*i
def srd(A,d,i,n):
    A(f's_mov_b32 s{d}, s{ptr(i)}\ns_mov_b32 s{d+1}, s{ptr(i)+1}\ns_mov_b32 s{d+2}, {n}\ns_mov_b32 s{d+3}, 0x20000')
def dma(A,voff,sr,sg,go,sl,lo,t=31,x=''):
    A(f's_add_u32 m0, s{sl}, {lo}\ns_add_u32 s{t}, s{sg}, {go}\nbuffer_load_dwordx4 v{voff}, {s(sr,4)}, s{t} offen{x} lds')
def flag(A,vval,soff,sr=WS):
    A(f's_mov_b64 exec, 1\nbuffer_store_dword v{vval}, off, {s(sr,4)}, s{soff} sc1\ns_mov_b64 exec, -1')
def spin(A,top):
    A(f's_sub_u32 s{sSpin}, s{sSpin}, 1\ns_cbranch_scc0 {top}\ns_mov_b32 s{sSpin}, 0')
def wait_dbg(A,off,val,vt=2,st=31,mask=None):
    t=A.lab('wd'); e=A.lab('wd')
    A(f'{t}:\nbuffer_load_dword v{vt}, off, {s(DB,4)}, 0 offset:{off} sc1\ns_waitcnt vmcnt(0)\nv_readfirstlane_b32 s{st}, v{vt}')
    if mask: A(f's_and_b32 s{st+1}, s{st}, {mask}\ns_cmp_ge_u32 s{st+1}, {val}')
    else: A(f's_cmp_ge_u32 s{st}, {val}')
    A(f's_cbranch_scc1 {e}\ns_sleep 2'); spin(A,t); A(f'{e}:')
def wait_flags(A,voff,soff,sval,vt,n=1,slp=1):
    t=A.lab('wf'); e=A.lab('wf')
    A(f'{t}:')
    for i in range(n): A(f'buffer_load_dword v{vt+i}, v{voff}, {s(WS,4)}, {soff} offen offset:{256*i} sc1')
    A('s_waitcnt vmcnt(0)')
    for i in range(1,n): A(f'v_min_u32 v{vt}, v{vt}, v{vt+i}')
    A(f'v_cmp_ge_u32 vcc, {sval}, v{vt}\ns_cbranch_vccz {e}')
    if slp: A(f's_sleep {slp}')
    spin(A,t); A(f'{e}:')
def prof(A,slot,on):
    if not on: return
    A(f's_memrealtime s[98:99]\ns_waitcnt lgkmcnt(0)\nv_mov_b32 v3, s98\ns_add_u32 s98, s97, {slot*4}')
    A(f's_mov_b64 exec, 1\nbuffer_store_dword v3, off, {s(WS,4)}, s98\ns_mov_b64 exec, -1')
def prologue(A,o):
    A(f'''s_cmp_ge_u32 s2, 256
s_cbranch_scc1 L_exit
s_load_dwordx16 s[64:79], s[0:1], 0
s_load_dwordx16 s[80:95], s[0:1], 64
s_getreg_b32 s3, hwreg(HW_REG_XCC_ID, 0, 4)
v_lshrrev_b32 v1, 6, v0
v_and_b32 v0, 63, v0
v_readfirstlane_b32 s{sW}, v1
s_mov_b32 s{sSpin}, 0x40000
v_lshlrev_b32 v1, 4, v0
s_waitcnt lgkmcnt(0)''')
    if o.get('fake'): A('s_and_b32 s31, s2, 24\ns_cmp_eq_u32 s31, 0\ns_cselect_b32 s3, 5, s3')
    srd(A,WS,15,0x10000000); srd(A,XS,0,2621440); srd(A,DB,14,256)
    A(f'''s_cmp_eq_u32 s3, 0
s_cselect_b32 s31, 0x401, 1
s_cmp_eq_u32 s3, 1
s_cselect_b32 s31, 0x100001, s31
v_mov_b32 v2, s31
v_mov_b32 v3, 0
s_cmp_lg_u32 s{sW}, 0
s_cbranch_scc1 L_p1
s_mov_b64 exec, 1
buffer_atomic_add v2, off, {s(DB,4)}, 0 sc0 sc1
s_waitcnt vmcnt(0)
ds_write_b32 v3, v2
s_waitcnt lgkmcnt(0)
s_mov_b64 exec, -1
L_p1:
s_barrier
ds_read_b32 v2, v3
s_waitcnt lgkmcnt(0)
v_readfirstlane_b32 s32, v2
s_barrier
s_and_b32 s33, s32, 1023
s_bfe_u32 s34, s32, 0xa000a
s_bfe_u32 s35, s32, 0xa0014
s_cmp_lg_u32 s33, 0
s_cbranch_scc1 L_p2''')
    A('v_mov_b32 v4, 0\nv_mov_b32 v5, 0\nv_mov_b32 v6, 0\nv_mov_b32 v7, 0')
    A(f's_lshl_b32 s31, s{sW}, 12')
    for i in range(4): A(f'buffer_store_dwordx4 v[4:7], v1, {s(WS,4)}, s31 offen offset:{1024*i} sc1')
    A(f'''s_waitcnt vmcnt(0)
v_mov_b32 v2, 1
s_mov_b64 exec, 1
buffer_atomic_add v2, off, {s(DB,4)}, 0 offset:128 sc1
s_mov_b64 exec, -1
L_p2:
s_cmp_eq_u32 s3, 0
s_cselect_b32 s36, s34, 99
s_cmp_eq_u32 s3, 1
s_cselect_b32 s36, s35, s36
s_cmp_lt_u32 s36, 32
s_cbranch_scc1 L_rec
s_min_u32 s34, s34, 32
s_min_u32 s35, s35, 32
s_sub_u32 s{sB}, s33, s34
s_sub_u32 s{sB}, s{sB}, s35
s_cmp_lt_u32 s{sB}, 192
s_cbranch_scc1 L_bulk''')
    wait_dbg(A,0,256,st=32,mask=1023)
    A(f'''s_bfe_u32 s34, s32, 0xa000a
s_bfe_u32 s35, s32, 0xa0014
s_min_u32 s34, s34, 32
s_min_u32 s35, s35, 32
s_sub_u32 s36, s{sB}, 192
s_add_u32 s36, s36, s34
s_mov_b32 s3, 0
s_cmp_lt_u32 s36, 32
s_cbranch_scc1 L_rec
s_mov_b32 s3, 1
s_sub_u32 s36, s36, 32
s_add_u32 s36, s36, s35
s_and_b32 s36, s36, 31
s_branch L_rec''')
```

```python
import re
TRANS=('v_exp_','v_log_','v_rcp_','v_rsq_','v_sqrt_','v_sin_','v_cos_')
def regs(op):
    op=op.strip().lstrip('-').strip('|')
    m=re.fullmatch(r'([vas])(\d+)',op)
    if m: return {(m.group(1),int(m.group(2)))}
    m=re.fullmatch(r'([vas])\[(\d+):(\d+)\]',op)
    if m: return {(m.group(1),i) for i in range(int(m.group(2)),int(m.group(3))+1)}
    if op in('vcc','vcc_lo','vcc_hi'): return {('s','vcc')}
    if op in('exec','exec_lo','exec_hi'): return {('s','exec')}
    if op=='m0': return {('s','m0')}
    return set()
class I:
    def __init__(s,line):
        s.line=line; t=line.split(';')[0].strip(); s.label=None; s.kind='x'; s.ws=1
        s.d=set(); s.r=set(); s.ab=set(); s.c=set(); s.p=0; s.tgt=None; s.mn=''
        if not t or t.startswith('.'): s.ws=0; return
        if t.endswith(':'): s.label=t[:-1]; s.ws=0; return
        mn,_,rest=t.partition(' '); s.mn=mn
        ops=[o.strip() for o in re.split(r',(?![^\[]*\])',rest)] if rest else []
        if ops: ops[-1:]=ops[-1].split()
        R=[regs(o) for o in ops]; U=lambda l:set().union(*l) if l else set()
        if mn.startswith(('v_mfma','v_smfmac')):
            s.kind='m'; s.p=8 if '32x32' in mn else 4; s.d=R[0]
            if 'smfmac' in mn: s.ab=R[1]|R[2]|R[3]; s.c=R[0]
            else: s.ab=R[1]|R[2]; s.c=R[3]
            s.r=s.ab|s.c
        elif mn.startswith('v_'):
            s.kind='v'; s.d=set(R[0]); s.r=U(R[1:])
            if 'swap' in mn: s.d|=R[1]; s.r|=R[0]
            if '_co_' in mn: s.d|=R[1]
            if mn.startswith(('v_fmac','v_pk_fmac','v_writelane','v_dot')) or 'dpp' in mn: s.r|=R[0]
            if mn.startswith('v_cmpx'): s.d|={('s','exec')}
            s.dpp='dpp' in mn or 'permlane' in mn
            s.tr=mn.startswith(TRANS); s.rl=mn.startswith(('v_readlane','v_readfirstlane','v_writelane'))
        elif mn.startswith(('buffer_','global_','ds_')):
            s.kind='mem'; s.lds=' lds' in t
            ld=('load' in mn or 'read' in mn or 'permute' in mn) and not s.lds
            if ld: s.d=R[0]; s.r=U(R[1:])
            else:
                s.r=U(R)
                if 'atomic' in mn and 'sc0' in t: s.d=R[0]
            s.wide=R[0] if (mn.startswith('buffer_store') and mn[-2:] in('x3','x4')) else set()
        elif mn.startswith('s_'):
            s.kind='s'
            if mn=='s_nop': s.ws=int(ops[0])+1
            elif 'branch' in mn: s.tgt=ops[0]
            elif mn.startswith(('s_cmp','s_waitcnt','s_barrier','s_bitcmp','s_sleep','s_setprio','s_endpgm')): s.r=U(R)
            else: s.d=R[0] if R else set(); s.r=U(R[1:])
            if 'saveexec' in mn: s.d=s.d|{('s','exec')}
def need(p,c):
    n=0; vg=lambda S:{x for x in S if x[0]!='s'}; sg=lambda S:{x for x in S if x[0]=='s'}
    if p.kind=='m':
        big=8 if p.p==4 else 12
        if c.kind=='m':
            if p.d&c.ab: n=max(n,big)
            if p.d&c.c and not(p.d==c.c and p.mn==c.mn): n=max(n,big-2)
            if p.d&c.d and not p.d&c.c: n=max(n,big-2 if p.d!=c.d else 0)
        elif c.kind in('v','mem'):
            if p.d&(c.r|c.d): n=max(n,big)
            if c.kind=='v' and p.c&c.d: n=max(n,3 if p.p==4 else 7)
    elif p.kind=='v':
        if c.kind=='m':
            if vg(p.d)&c.r: n=2
            if ('s','exec') in p.d: n=4
        elif c.kind=='v':
            if p.tr and vg(p.d)&c.r: n=1
            if c.rl and vg(p.d)&c.r: n=max(n,1)
            if c.dpp and vg(p.d)&c.r: n=2
            if sg(p.d)&c.r: n=max(n,4 if c.rl else 2)
            if ('s','exec') in p.d and (c.dpp or c.rl): n=5
        elif c.kind=='mem':
            if sg(p.d)&c.r: n=5
    elif p.kind=='mem':
        if p.wide&c.d: n=2
    elif p.kind=='s':
        if ('s','m0') in p.d and c.kind=='mem' and c.lds: n=1
    return n
def fix(lines):
    L=[I(l) for l in lines]; lab={x.label:i for i,x in enumerate(L) if x.label}
    out=[]; hist=[]; nn=0
    def req(hist,c,extra=0):
        d=extra; m=0
        for p in reversed(hist):
            if d>=12: break
            m=max(m,need(p,c)-d); d+=p.ws
        return m
    for i,x in enumerate(L):
        if x.ws==0: out.append(x.line); continue
        m=req(hist,x)
        if x.tgt:
            d=1; j=lab[x.tgt]
            while d<12 and j<len(L):
                y=L[j]
                if y.ws: m=max(m,req(hist,y,d)); d+=y.ws
                if y.mn in('s_branch','s_endpgm'): break
                j+=1
        if m>0:
            nop=I('s_nop %d'%(m-1)); out.append('  '+nop.line); hist.append(nop); nn+=m
        out.append(x.line); hist.append(x); hist=hist[-14:]
        if x.mn in('s_branch','s_endpgm'): hist=[]
    return out
class Asm:
    def __init__(s): s.l=[]; s.n=0
    def __call__(s,t):
        for x in t.split('\n'):
            x=x.strip()
            if x: s.l.append(x if x.endswith(':') else '  '+x)
    def lab(s,p='L'): s.n+=1; return '%s_%d'%(p,s.n)
def v(i,n=1): return 'v%d'%i if n==1 else 'v[%d:%d]'%(i,i+n-1)
def a(i,n=1): return 'a%d'%i if n==1 else 'a[%d:%d]'%(i,i+n-1)
def s(i,n=1): return 's%d'%i if n==1 else 's[%d:%d]'%(i,i+n-1)
```

```python
from common import *
def KA(t): return a(6*t,4)
def KB(t): return a(6*t+4,2)
def VA(c): return a(96+4*c,4)
def roleA(A,o):
    pr=o.get('prof'); ws=s(WS,4)
    vQ,vQ2,vO,vO2,vZ,vL4,vG=4,5,6,7,8,9,10
    Q,QN,C,S0,P,O=16,24,32,48,80,96
    sTok,sN,sT,sMode,sQ,sLW=32,33,34,35,36,37
    MX=49152; BAD=MX+4096
    A(f'''v_lshlrev_b32 v{vL4}, 2, v0
s_mov_b32 s38, {APF}''')
    wait_flags(A,vL4,'s38',0,12,n=3,slp=4)
    A(f'''v_lshrrev_b32 v2, 5, v0
v_and_b32 v3, 31, v0
v_cmp_eq_u32 vcc, 0, v2
v_mov_b32 v12, 0x7ff00000
v_mul_u32_u24 v13, 40, v3
v_lshl_add_u32 v{vQ}, v2, 4, v13
v_lshl_add_u32 v{vO}, v2, 3, v13
v_add_u32 v13, 32, v13
v_cndmask_b32 v{vQ2}, v12, v13, vcc
v_and_b32 v13, 19, v3
v_and_b32 v14, 4, v3
v_lshl_add_u32 v13, v14, 1, v13
v_and_b32 v14, 8, v3
v_lshrrev_b32 v14, 1, v14
v_add_u32 v13, v13, v14
v_mul_u32_u24 v13, 40, v13
v_add_u32 v14, 32, v13
v_cndmask_b32 v14, v12, v14, vcc
v_lshl_add_u32 v13, v2, 4, v13
v_lshlrev_b32 v15, 12, v3
v_lshl_add_u32 v15, v2, 4, v15
v_cmp_ge_u32 vcc, 20, v3
v_cndmask_b32 v15, v12, v15, vcc
v_lshlrev_b32 v{vZ}, 4, v3
s_mul_i32 s38, s{sW}, {512*40}
s_add_u32 s38, s38, {AK}
s_lshl_b32 s39, s{sW}, 10
s_add_u32 s39, s39, {AVT}
s_mul_i32 s{sTok}, s{sB}, 3
s_sub_u32 s{sTok}, s{sTok}, 64
s_cmp_lt_u32 s{sB}, 32
s_cselect_b32 s{sTok}, s{sB}, s{sTok}
s_cselect_b32 s{sN}, 1, 3
s_lshl_b32 s{sTok}, s{sTok}, 2
s_mul_i32 s{sLW}, s{sW}, 3072''')
    for t in range(16):
        A(f'buffer_load_dwordx4 {KA(t)}, v13, {ws}, s38 offen offset:{(t%3)*1280}\nbuffer_load_dwordx2 {KB(t)}, v14, {ws}, s38 offen offset:{(t%3)*1280}')
        if t%3==2: A('s_add_u32 s38, s38, 3840')
        for c in(2*t,2*t+1): A(f'buffer_load_dwordx4 {VA(c)}, v15, {ws}, s39 offen offset:{32*c}')
        if t==11: A('s_waitcnt vmcnt(16)')
    def ldq(): A(f'buffer_load_dwordx4 {v(QN,4)}, v{vQ}, {ws}, s{sQ} offen\nbuffer_load_dwordx2 {v(QN+4,2)}, v{vQ2}, {ws}, s{sQ} offen\ns_add_u32 s{sQ}, s{sQ}, 1280')
    def q0(): A(f's_mul_i32 s{sQ}, s{sTok}, 1280\ns_add_u32 s{sQ}, s{sQ}, {AQ}\ns_mov_b32 s{sT}, 0'); ldq()
    def nxq():
        A('s_waitcnt vmcnt(0)')
        for i in range(6): A(f'v_mov_b32 v{Q+i}, v{QN+i}')
        ldq()
    def qk1(t,c): A(f'v_mfma_f32_32x32x16_bf16 {v(S0+16*(t&1),16)}, {KA(t)}, {v(Q,4)}, {c}')
    def qk2(t): A(f'v_mfma_f32_32x32x8_bf16 {v(S0+16*(t&1),16)}, {KB(t)}, {v(Q+4,2)}, {v(S0+16*(t&1),16)}')
    q0()
    A(f'L_aI:\ns_mov_b32 s{sMode}, 0')
    for i in range(16): A(f'v_mov_b32 v{C+i}, 0')
    A(f'''L_aR:
s_add_u32 s38, s{sTok}, s{sW}
s_lshl_b32 s38, s38, 1
s_add_u32 s38, s38, {AVT+21*4096}
buffer_load_ushort v{vG}, off, {ws}, s38
v_add_u32 v11, s{sLW}, v1
L_aT:''')
    nxq()
    A(f's_cmp_eq_u32 s{sMode}, 0\ns_cbranch_scc1 L_aF\ns_lshl_b32 s38, s{sT}, 10\nv_lshrrev_b32 v12, 2, v{vZ}\nv_add_u32 v12, s38, v12')
    for i in range(8): A(f'ds_read_b32 v{C+i}, v12 offset:{MX+128*i}')
    A('s_waitcnt lgkmcnt(0)')
    for i in range(1,8): A(f'v_max_f32 v{C}, v{C}, v{C+i}')
    A(f'v_sub_f32 v{C}, 0, v{C}')
    for i in range(1,16): A(f'v_mov_b32 v{C+i}, v{C}')
    A('L_aF:')
    qk1(0,v(C,16)); qk2(0)
    for t in range(16):
        S=S0+16*(t&1); ex=lambda i:A(f'v_exp_f32 v{S+i}, v{S+i}'); cv=lambda i:A(f'v_cvt_pk_bf16_f32 v{P+i}, v{S+2*i}, v{S+2*i+1}')
        pv=lambda c:A(f'v_mfma_f32_32x32x16_bf16 {v(O,16)}, {VA(c)}, {v(P+4*(c&1),4)}, {v(O,16) if c else 0}')
        if t<15: qk1(t+1,v(C,16))
        for i in range(4): ex(i)
        if t: pv(2*t-1)
        for i in range(4,8): ex(i)
        cv(0);cv(1)
        if t<15: qk2(t+1)
        ex(8);cv(2);ex(9);cv(3);ex(10);ex(11)
        pv(2*t)
        for i in range(12,16): ex(i)
        for i in range(4,8): cv(i)
    pv(31)
    for i in range(3): A(f'ds_write_b128 v11, {v(O+4*i,4)} offset:{1024*i}')
    A(f'''v_add_u32 v11, 12288, v11
s_add_u32 s{sT}, s{sT}, 1
s_cmp_lt_u32 s{sT}, 4
s_cbranch_scc1 L_aT
s_mov_b32 s{sT}, 0
s_lshl_b32 s38, s{sLW}, 2
v_add_u32 v12, s38, v1
v_add_u32 v13, s38, v{vZ}
s_waitcnt lgkmcnt(0)
s_barrier''')
    for w in range(4):
        A(f'ds_read_b32 v{P+w}, v13 offset:{3072*w+2048+512}')
        for i in range(3): A(f'ds_read_b128 {v(112+12*w+4*i,4)}, v12 offset:{3072*w+1024*i}')
    A(f'''v_lshlrev_b32 v{vG}, 16, v{vG}
v_mul_f32 v{vG}, 0xbfb8aa3b, v{vG}
v_exp_f32 v{vG}, v{vG}
s_waitcnt lgkmcnt(0)
v_add_f32 v{P}, v{P}, v{P+1}
v_add_f32 v{P+2}, v{P+2}, v{P+3}
v_add_f32 v{vG}, 1.0, v{vG}
v_add_f32 v{P}, v{P}, v{P+2}
v_rcp_f32 v{vG}, v{vG}
v_rcp_f32 v{P+1}, v{P}
v_subrev_u32 v{P}, 0x21800000, v{P}
v_cmp_le_u32 vcc, 0x3c000000, v{P}
v_mul_f32 v{vG}, v{vG}, v{P+1}
s_or_b32 s38, vcc_lo, vcc_hi
v_mov_b32 v12, s38
s_lshl_b32 s39, s{sW}, 2
v_mov_b32 v13, s39
ds_write_b32 v13, v12 offset:{BAD}
v_mov_b32 v13, 0''')
    for w in range(1,4):
        for i in range(12): A(f'v_add_f32 v{112+i}, v{112+i}, v{112+12*w+i}')
    A(f's_waitcnt lgkmcnt(0)\ns_barrier\nds_read_b128 {v(P,4)}, v13 offset:{BAD}')
    for i in range(12): A(f'v_mul_f32 v{112+i}, v{112+i}, v{vG}')
    for i in range(6): A(f'v_cvt_pk_bf16_f32 v{112+i}, v{112+2*i}, v{113+2*i}')
    A(f'''s_waitcnt lgkmcnt(0)
v_or3_b32 v{P}, v{P}, v{P+1}, v{P+2}
v_or_b32 v{P}, v{P}, v{P+3}
v_readfirstlane_b32 s38, v{P}
s_cmp_lg_u32 s{sMode}, 0
s_cselect_b32 s38, 0, s38
s_cmp_lg_u32 s38, 0
s_cbranch_scc1 L_aS
s_add_u32 s38, s{sTok}, s{sW}
s_mul_i32 s38, s38, 1280
s_add_u32 s38, s38, {AO}
buffer_store_dwordx2 v[112:113], v{vO}, {ws}, s38 offen sc1
buffer_store_dwordx2 v[114:115], v{vO}, {ws}, s38 offen offset:16 sc1
buffer_store_dwordx2 v[116:117], v{vQ2}, {ws}, s38 offen sc1
s_add_u32 s{sTok}, s{sTok}, 4
s_sub_u32 s{sN}, s{sN}, 1
s_cmp_lg_u32 s{sN}, 0
s_cbranch_scc1 L_aI
s_branch L_aE
L_aS:
s_waitcnt vmcnt(0)''')
    q0()
    A(f's_lshl_b32 s38, s{sW}, 8\nv_add_u32 v11, s38, v{vL4}\nL_aM:')
    nxq()
    for t in range(16):
        qk1(t,0); qk2(t); S=S0+16*(t&1)
        if t==0: A(f'v_mov_b32 v12, v{S}')
        for i in range(8): A(f'v_max3_f32 v12, v12, v{S+2*i}, v{S+2*i+1}')
    A(f'''ds_write_b32 v11, v12 offset:{MX}
v_add_u32 v11, 1024, v11
s_add_u32 s{sT}, s{sT}, 1
s_cmp_lt_u32 s{sT}, 4
s_cbranch_scc1 L_aM
s_waitcnt vmcnt(0) lgkmcnt(0)
s_barrier
s_mov_b32 s{sMode}, 1''')
    q0()
    A(f'''s_branch L_aR
L_aE:
s_waitcnt vmcnt(0)
s_barrier
v_mov_b32 v12, 1
s_lshl_b32 s31, s{sB}, 2
s_add_u32 s31, s31, {AAF}''')
    flag(A,12,31)
    prof(A,3,pr)
```

```python
from common import *
def W(n,k): return a(n,k) if n<256 else v(112+n-256,k)
def roleP(A,o):
    pr=o.get('prof')
    vS,vT,vX,vRA,vRB,vE,vBias,vF,vRE=4,5,6,7,8,9,10,11,12
    XF=16; ACC=40; ST=72; EA=88
    sQ,sCG,sM,sG,sL,sRS,sXG,sXL,sOut,sFl,sJ,sES,sEO,sSc,sEN,sXB=32,33,34,35,36,37,38,39,40,41,42,43,44,45,46,47
    A(f'''L_bulk:
s_lshl_b32 s97, s{sB}, 2
s_add_u32 s97, s97, s{sW}
s_lshl_b32 s97, s97, 8
s_add_u32 s97, s97, {PROF}''')
    prof(A,0,pr)
    A(f'''s_and_b32 s{sQ}, s{sB}, 3
s_lshr_b32 s{sCG}, s{sB}, 2
s_lshr_b32 s{sM}, s{sCG}, 4''')
    srd(A,WA,7,5242880)
    for m in(1,2):
        l=A.lab(); A(f's_cmp_lg_u32 s{sM}, {m}\ns_cbranch_scc1 {l}\ns_mov_b32 s{WA}, s{ptr(7+m)}\ns_mov_b32 s{WA+1}, s{ptr(7+m)+1}\n{l}:')
    A(f'''v_and_b32 v2, 15, v0
v_lshrrev_b32 v3, 4, v0
v_mul_u32_u24 v{vX}, 1280, v2
v_lshl_add_u32 v{vX}, v3, 4, v{vX}
s_and_b32 s31, s{sW}, 1
s_lshr_b32 s48, s{sW}, 1
s_mul_i32 s{sXG}, s31, {16*1280}
s_mul_i32 s49, s48, 640
s_add_u32 s{sXG}, s{sXG}, s49
s_mul_i32 s49, s{sQ}, {32*1280}
s_add_u32 s{sXG}, s{sXG}, s49
s_mul_i32 s{sXL}, s31, 20480
s_mul_i32 s49, s48, 10240
s_add_u32 s{sXL}, s{sXL}, s49''')
    def xdma(i): dma(A,vX,XS,sXG,(i//10)*4*32*1280+(i%10)*64,sXL,(i//10)*40960+(i%10)*1024)
    for i in range(20): xdma(i)
    A(f'''v_lshrrev_b32 v{vS}, 3, v0
v_lshlrev_b32 v{vS}, 13, v{vS}
v_and_b32 v13, 7, v0
v_lshl_add_u32 v{vS}, v13, 4, v{vS}
s_and_b32 s{sG}, s{sCG}, 15
s_lshl_b32 s{sG}, s{sG}, 2
s_add_u32 s{sG}, s{sG}, s{sW}
s_lshl_b32 s{sOut}, s{sG}, 12
s_lshr_b32 s{sFl}, s{sG}, 1
s_lshl_b32 s{sFl}, s{sFl}, 5
s_lshl_b32 s{sG}, s{sG}, 7
s_mul_i32 s{sL}, s{sW}, 20480
s_add_u32 s{sL}, s{sL}, 81920
v_lshrrev_b32 v13, 2, v2
v_lshl_add_u32 v13, v3, 3, v13
v_and_b32 v14, 3, v0
v_lshlrev_b32 v14, 3, v14
v_add_u32 v14, s{sL}, v14
v_lshl_add_u32 v{vT}, v13, 7, v14
v_lshl_add_u32 v15, v13, 5, v14
s_lshl_b32 s49, s{sM}, 24
s_add_u32 s{sOut}, s{sOut}, s49
s_lshl_b32 s49, s{sQ}, 18
s_add_u32 s{sOut}, s{sOut}, s49
s_add_u32 s{sOut}, s{sOut}, {QX}
s_lshl_b32 s49, s{sM}, 3
s_add_u32 s{sFl}, s{sFl}, s49
s_and_b32 s49, s{sW}, 1
s_lshl_b32 s49, s49, 2
s_add_u32 s{sFl}, s{sFl}, s49
s_add_u32 s{sFl}, s{sFl}, s{sQ}
s_lshl_b32 s{sFl}, s{sFl}, 2''')
    lk,lv,lg,le=A.lab(),A.lab(),A.lab(),A.lab()
    SCA=0x3ea52b5c
    A(f'''v_mov_b32 v{vBias}, 0
s_mov_b32 s{sSc}, 1.0
s_mov_b32 s50, 0x7ff00000
s_cmp_ge_u32 s{sCG}, 44
s_cbranch_scc1 {lg}
s_cmp_ge_u32 s{sCG}, 42
s_cbranch_scc1 {lv}
s_cmp_ge_u32 s{sCG}, 40
s_cbranch_scc1 {lk}''')
    srd(A,WB,1,819200)
    A(f'''s_mov_b32 s{sRS}, 1280
s_lshl_b32 s51, s{sCG}, 5
s_mov_b32 s{sSc}, {SCA}
s_mov_b32 s{sES}, {16*1280}
s_add_u32 s{sEO}, s51, {AQ}
v_mul_u32_u24 v{vE}, 1280, v2
v_lshl_add_u32 v{vE}, v3, 3, v{vE}
s_mov_b32 s{sEN}, 0
s_branch {le}
{lk}:''')
    srd(A,WB,2,25600)
    A(f'''s_mov_b32 s{sRS}, 40
s_and_b32 s51, s{sCG}, 1
s_lshl_b32 s51, s51, 5
s_mov_b32 s{sES}, 640
s_add_u32 s{sEO}, s51, {AK}
v_mul_u32_u24 v{vE}, 40, v2
v_lshlrev_b32 v13, 3, v3
v_add_u32 v{vE}, v{vE}, v13
v_add_u32 v13, s51, v13
v_cmp_gt_u32 vcc, 40, v13
v_mov_b32 v13, s50
v_cndmask_b32 v{vE}, v13, v{vE}, vcc
s_mov_b32 s{sEN}, 0
s_branch {le}
{lv}:''')
    srd(A,WB,3,25600)
    A(f'''s_mov_b32 s{sRS}, 40
s_and_b32 s51, s{sCG}, 1
s_lshl_b32 s52, s51, 4
s_lshl_b32 s51, s51, 5
s_mov_b32 s{sES}, 32
s_mov_b32 s{sEO}, {AVT}
v_add_u32 v13, s52, v2
v_lshlrev_b32 v{vE}, 12, v13
v_lshl_add_u32 v{vE}, v3, 3, v{vE}
v_cmp_gt_u32 vcc, 20, v13
v_mov_b32 v13, s50
v_cndmask_b32 v{vE}, v13, v{vE}, vcc
s_mov_b32 s{sEN}, 1
s_branch {le}
{lg}:''')
    srd(A,WB,12,1280)
    A(f'''s_mov_b32 s{sRS}, 0
s_mov_b32 s51, 0
s_mov_b32 s{sES}, 32
s_cmp_eq_u32 s{sCG}, 44
s_mov_b32 s{sEO}, {AVT+20*4096}
s_cselect_b32 s{sEO}, {AVT+21*4096}, s{sEO}
s_cselect_b32 s{sSc}, 1.0, 0
s_cselect_b32 s52, 0, 1.0
v_mov_b32 v{vBias}, s52
s_cmp_le_u32 s{sCG}, 45
s_cselect_b32 s52, 1, 0
v_lshlrev_b32 v{vE}, 3, v3
v_cmp_gt_u32 vcc, s52, v2
v_mov_b32 v13, s50
v_cndmask_b32 v{vE}, v13, v{vE}, vcc
s_mov_b32 s{sEN}, 1
{le}:
v_lshrrev_b32 v13, 1, v0
v_mul_lo_u32 v13, v13, s{sRS}
v_and_b32 v14, 1, v0
v_lshl_add_u32 v13, v14, 4, v13
s_lshl_b32 s{sRS}, s{sRS}, 5''')
    def issue(c):
        for i in range(4):
            if c<20: dma(A,vS,WA,sG,(32*c+8*i)*8192,sL,(c%5)*4096+i*1024)
            else:
                dma(A,13,WB,51,0,sL,(c%5)*4096+i*1024); A(f's_add_u32 s51, s51, s{sRS}')
    for c in range(5): issue(c)
    for c in range(25):
        A(f's_waitcnt vmcnt({4*min(4,24-c)})')
        for n in range(4):
            for mm in range(2):
                if c<20: A(f'ds_read_b64_tr_b16 {W((n*20+c)*4+2*mm,2)}, v{vT} offset:{(c%5)*4096+mm*512+n*32}')
                else: A(f'ds_read_b64_tr_b16 {W(320+((c-20)*4+n)*4+2*mm,2)}, v15 offset:{(c%5)*4096+n*1024+mm*128}')
        A('s_waitcnt lgkmcnt(0)')
        if c+5<25: issue(c+5)
    l=A.lab()
    A(f's_cmp_lt_u32 s{sCG}, 44\ns_cbranch_scc1 {l}\nv_lshlrev_b32 v13, 4, v3')
    for k in range(20): A(f'buffer_load_dwordx4 {W(320+4*k,4)}, v13, {s(WB,4)}, 0 offen offset:{64*k}')
    A(f'{l}:')
    wait_dbg(A,128,4,vt=13)
    A(f'''v_mov_b32 v{vRA}, v1
v_add_u32 v{vRB}, 40960, v1
s_mul_i32 s49, s{sW}, 20480
v_add_u32 v{vRE}, s49, v1
s_lshr_b32 s49, s{sW}, 1
s_lshl_b32 s49, s49, 2
s_add_u32 s49, s49, s{sQ}
s_lshl_b32 s49, s49, 1
s_and_b32 s52, s{sW}, 1
s_add_u32 s49, s49, s52
s_mul_i32 s49, s49, s{sES}
s_add_u32 s{sEO}, s{sEO}, s49
s_lshl_b32 s{sES}, s{sES}, 4
s_mov_b32 s{sJ}, 0
s_mov_b32 s{sXB}, 81920
v_mov_b32 v{vF}, s{sQ}''')
    prof(A,1,pr)
    A(f's_cmp_eq_u32 s{sM}, 2\ns_cbranch_scc1 L_pN')
    for var in 'TN':
        A(f'L_p{var}:\ns_barrier')
        A(f's_add_u32 s{sXG}, s{sXG}, {8*32*1280}\ns_add_u32 s{sXL}, s{sXL}, s{sXB}')
        for sg in range(2):
            vr=(vRA,vRB)[sg]
            def rd(k):
                for tt in range(2): A(f'ds_read_b128 {v(XF+(k%3)*8+tt*4,4)}, v{vr} offset:{(tt*20+k)*1024}')
            rd(0); rd(1)
            for k in range(20):
                if k+2<20: rd(k+2)
                if sg==0: xdma(k)
                A(f's_waitcnt lgkmcnt({2*min(2,19-k)})')
                for n in range(4):
                    for tt in range(2):
                        d=v(ACC+(n*2+tt)*4,4); x=v(XF+(k%3)*8+tt*4,4); w=W((n*20+k)*4,4)
                        A(f'v_mfma_f32_16x16x32_bf16 {d}, {w if var=="T" else x}, {x if var=="T" else w}, {d if k else 0}')
            A(f's_waitcnt vmcnt({20 if sg==0 else 0})'); flag(A,vF,sFl)
            A(f'v_add_u32 v{vF}, 4, v{vF}')
            for wl in range(2):
                for t in range(2):
                    for h in range(2):
                        n,tt=(2*wl+h,t) if var=='T' else (2*wl+t,h)
                        b=ACC+(n*2+tt)*4; d=ST+(wl*2+t)*4+2*h
                        A(f'v_cvt_pk_bf16_f32 v{d}, v{b}, v{b+1}\nv_cvt_pk_bf16_f32 v{d+1}, v{b+2}, v{b+3}')
                    A(f'buffer_store_dwordx4 {v(ST+(wl*2+t)*4,4)}, v1, {s(WS,4)}, s{sOut} offen offset:{(wl*2+t)*1024} sc1')
            A(f's_add_u32 s{sOut}, s{sOut}, {4<<18}')
        ln,lx=A.lab(),A.lab()
        A(f's_cmp_lg_u32 s{sEN}, 0\ns_cbranch_scc1 {ln}')
        for ev in 'TN':
            def rd(k): A(f'ds_read_b128 {v(XF+(k%6)*4,4)}, v{vRE} offset:{k*1024}')
            for k in range(5): rd(k)
            for k in range(20):
                if k+5<20: rd(k+5)
                A(f's_waitcnt lgkmcnt({min(5,19-k)})')
                d=v(EA,4); x=v(XF+(k%6)*4,4); w=W(320+4*k,4)
                A(f'v_mfma_f32_16x16x32_bf16 {d}, {w if ev=="T" else x}, {x if ev=="T" else w}, {d if k else 0}')
            A(f's_branch {lx}\n{ln}:' if ev=='T' else f'{lx}:')
        for r in range(4): A(f'v_fma_f32 v{EA+4+r}, v{EA+r}, s{sSc}, v{vBias}')
        A(f'''v_cvt_pk_bf16_f32 v{EA+4}, v{EA+4}, v{EA+5}
v_cvt_pk_bf16_f32 v{EA+5}, v{EA+6}, v{EA+7}
buffer_store_dwordx2 {v(EA+4,2)}, v{vE}, {s(WS,4)}, s{sEO} offen sc1
s_add_u32 s{sEO}, s{sEO}, s{sES}
v_add_u32 v{vRA}, s{sXB}, v{vRA}
v_add_u32 v{vRB}, s{sXB}, v{vRB}
v_add_u32 v{vRE}, s{sXB}, v{vRE}
s_sub_u32 s{sXB}, 0, s{sXB}
s_add_u32 s{sJ}, s{sJ}, 1
s_cmp_lt_u32 s{sJ}, 8
s_cbranch_scc1 L_p{var}''')
        if var=='T': A('s_branch L_pE')
    A('L_pE:\ns_waitcnt vmcnt(0)'); flag(A,vF,sFl)
    A(f's_barrier\ns_lshl_b32 s31, s{sB}, 2\ns_add_u32 s31, s31, {APF}'); flag(A,vF,31)
    prof(A,2,pr)
```

```python
from common import *
def W(n,k): return a(n,k) if n<256 else v(96+n-256,k)
SH=147456
vL,vA,vU,vW4,vW1,vR4,vR1,vOW,vP,vPub,vWm,vFo,vFl,vD,vIx=0,1,2,4,5,6,7,8,9,10,11,12,13,14,15
SEL=16; ONE=20
sX,sH,sS,sRed,sML,sMR,sPb,sKV,sKM,sPS,sPR,sPD,sRF,sPF,sSc,sSl,sLim=3,36,37,38,39,40,41,42,43,44,45,46,47,48,49,50,51
sPar=52; sM=54
SM='v_smfmac_f32_16x16x64_bf16'; M32='v_mfma_f32_16x16x32_bf16'; M16='v_mfma_f32_16x16x16_bf16'
slot=lambda c:(c%9)*4096
def roleR(A,o):
    pr=o.get('prof')
    A(f'''L_rec:
s_lshl_b32 s97, s{sX}, 5
s_add_u32 s97, s97, s{sH}
s_add_u32 s97, s97, 192
s_lshl_b32 s97, s97, 2
s_add_u32 s97, s97, s{sW}
s_lshl_b32 s97, s97, 8
s_add_u32 s97, s97, {PROF}''')
    prof(A,0,pr)
    A(f'''v_mov_b32 v24, v0
v_and_b32 v25, 15, v0
v_lshrrev_b32 v26, 4, v0
v_lshrrev_b32 v27, 2, v0
v_lshlrev_b32 v27, 13, v27
v_and_b32 v31, 3, v0
v_lshl_add_u32 v27, v31, 4, v27
s_mul_i32 s33, s{sW}, 36864
s_lshl_b32 s34, s{sH}, 8
s_lshl_b32 s31, s{sW}, 6
s_add_u32 s34, s34, s31
s_mul_i32 s31, s{sX}, {320*8192}
s_sub_u32 s35, {320*8192}, s31
s_add_u32 s35, s35, s34
s_add_u32 s34, s34, s31
s_mul_i32 s62, s{sH}, 163840
s_mul_i32 s31, s{sX}, 640
s_add_u32 s62, s62, s31
s_mul_i32 s31, s{sW}, 160
s_add_u32 s62, s62, s31''')
    srd(A,WA,7,5242880); srd(A,WB,10,5242880)
    def issue(c):
        if c in(10,20): A(f's_mov_b32 s{WA}, s{ptr(7+c//10)}\ns_mov_b32 s{WA+1}, s{ptr(7+c//10)+1}')
        for i in range(4):
            if c==25 or c>30: dma(A,28,WB,62,32*i*1280+32*(0 if c==25 else c-30),33,slot(c)+i*1024)
            else:
                loc=(c%10<5) if c<20 else c>25
                kk=c%5 if c<25 else c-26
                dma(A,27,WA,34 if loc else 35,(64*kk+16*i)*8192,33,slot(c)+i*1024)
    for c in range(9): issue(c)
    A(f'''v_lshrrev_b32 v28, 1, v0
v_mul_u32_u24 v28, 1280, v28
v_and_b32 v32, 1, v0
v_lshl_add_u32 v28, v32, 4, v28
v_lshlrev_b32 v31, 3, v31
v_add_u32 v31, s33, v31
v_bfe_u32 v33, v0, 2, 1
v_bfe_u32 v34, v0, 3, 1
v_bfe_u32 v35, v0, 4, 1
v_bfe_u32 v36, v0, 5, 1
v_lshl_add_u32 v29, v34, 3, v33
v_lshl_add_u32 v29, v35, 2, v29
v_lshl_add_u32 v29, v36, 4, v29
v_lshl_add_u32 v29, v29, 6, v31
v_lshl_add_u32 v30, v34, 4, v33
v_lshl_add_u32 v30, v35, 5, v30
v_lshl_add_u32 v30, v36, 2, v30
v_lshl_add_u32 v30, v30, 5, v31
v_add_u32 v{vR4}, {SH}, v1
v_add_u32 v{vL}, s33, v1
v_lshrrev_b32 v37, 1, v25
v_lshlrev_b32 v{vA}, 8, v26
v_lshl_add_u32 v{vA}, v32, 7, v{vA}
v_lshl_add_u32 v{vA}, v37, 4, v{vA}
v_mov_b32 v{vU}, v{vA}
v_add_u32 v{vA}, {SH}, v{vA}
s_lshl_b32 s31, s{sW}, 10
v_add_u32 v{vW4}, s31, v{vR4}
v_lshlrev_b32 v{vR1}, 2, v24
v_add_u32 v{vR1}, {SH+4096}, v{vR1}
s_lshl_b32 s31, s{sW}, 8
v_add_u32 v{vW1}, s31, v{vR1}
s_lshr_b32 s31, s{sW}, 1
s_lshl_b32 s31, s31, 10
s_and_b32 s63, s{sW}, 1
s_lshl_b32 s32, s63, 3
s_add_u32 s31, s31, s32
s_add_u32 s31, s31, 10240
v_add_u32 v{vOW}, s31, v{vR4}
v_and_b32 v38, 7, v24
v_lshlrev_b32 v{vPub}, 4, v38
v_lshl_add_u32 v{vPub}, v26, 2, v{vPub}
v_lshl_add_u32 v{vP}, v34, 12, v{vPub}
v_lshlrev_b32 v{vWm}, 7, v25
v_lshl_add_u32 v{vWm}, v35, 24, v{vWm}
v_add_u32 v{vWm}, {SH}, v{vWm}
v_lshl_add_u32 v{vFo}, v25, 2, 32
s_mov_b32 s{sPar}, 0xaaaaaaaa
s_mov_b32 s{sPar+1}, 0xaaaaaaaa
v_mov_b32 v39, 0x4444
v_mov_b32 v40, 0xeeee
v_cndmask_b32 v{vIx}, v39, v40, {s(sPar,2)}
v_mov_b32 v39, 0x3f80
v_mov_b32 v40, 1.0
v_and_b32 v41, 2, v24
v_cmp_eq_u32 vcc, 0, v41
v_cndmask_b32 v39, v40, v39, vcc
v_lshrrev_b32 v41, 2, v25
v_cmp_eq_u32 vcc, v41, v26
v_cndmask_b32 v{SEL}, 0, v39, vcc
v_mov_b32 v{SEL+1}, 0
v_mov_b32 v{SEL+2}, 0
v_mov_b32 v{SEL+3}, v{SEL}
s_mov_b32 s{sSc}, 0x3e0293ee
s_mov_b32 s{sLim}, 0x42800000
s_mov_b32 s{sSl}, -1
s_mov_b32 s{sS}, 0''')
    for i in range(4):
        A(f'v_mov_b32 v{ONE+i}, 0x3f803f80\ns_mov_b32 s{sM+2*i}, {0x03030303<<(2*i)}\ns_mov_b32 s{sM+2*i+1}, {0x03030303<<(2*i)}\nv_mov_b32 v{44+i}, -1')
    if o.get('nat',0)&1: A(f'v_and_b32 v{vP}, 31, v24\nv_lshlrev_b32 v{vP}, 2, v{vP}\nv_lshl_add_u32 v{vP}, v36, 12, v{vP}')
    if o.get('nat',0)&2: A(f'v_lshlrev_b32 v{vU}, 4, v24')
    if o.get('nat',0)&4: A(f'v_and_b32 v{vPub}, 31, v24\nv_lshlrev_b32 v{vPub}, 2, v{vPub}')
    l=A.lab()
    A(f'''s_cmp_lt_u32 s{sW}, 2
s_cbranch_scc1 {l}
s_lshl_b32 s31, s63, 11
v_add_u32 v{vU}, s31, v{vR4}
{l}:
s_add_u32 s31, s{sH}, 32
s_cmp_eq_u32 s{sW}, 1
s_cselect_b32 s31, s31, 99
s_cmp_eq_u32 s{sW}, 0
s_cselect_b32 s{sRed}, s{sH}, s31
s_mul_i32 s31, s{sX}, {64*5120}
s_sub_u32 s{sMR}, {MEMS+64*5120-SH}, s31
s_add_u32 s{sML}, s31, {MEMP-SH}
s_lshl_b32 s32, s{sRed}, 7
s_add_u32 s{sPb}, s31, s32
s_add_u32 s{sPb}, s{sPb}, {MEMP}
s_add_u32 s31, s31, {PART}
s_lshl_b32 s32, s{sRed}, 12
s_add_u32 s{sPR}, s31, s32
s_mul_i32 s32, s{sW}, 40960
s_add_u32 s{sPS}, s31, s32
s_lshl_b32 s32, s{sH}, 7
s_add_u32 s{sPS}, s{sPS}, s32
s_mov_b32 s{sPD}, 163840
s_mov_b32 s{sPF}, s32
s_lshl_b32 s31, s{sX}, 2
s_add_u32 s31, s31, s{sW}
s_lshl_b32 s31, s31, 2
s_add_u32 s{sRF}, s32, s31
s_add_u32 s{sRF}, s{sRF}, {RF}
s_lshl_b32 s31, s{sH}, 2
s_add_u32 s31, s31, s{sW}
s_lshl_b32 s{sKV}, s31, 11
s_add_u32 s{sKV}, s{sKV}, {KX-SH}
s_lshl_b32 s31, s31, 10
s_add_u32 s31, s31, {KM-SH}
s_lshl_b32 s32, s{sH}, 11
s_add_u32 s32, s32, {VM-SH-10240}
s_cmp_eq_u32 s{sX}, 0
s_cselect_b32 s{sKM}, s31, s32''')
    wait_dbg(A,0,256,vt=42,st=31,mask=1023)
    A(f'''s_bfe_u32 s32, s31, 0xa000a
s_bfe_u32 s31, s31, 0xa0014
s_min_u32 s63, s31, s32
s_cmp_ge_u32 s63, 32
s_cselect_b32 s31, 0, {MEMS-MEMP}
s_add_u32 s{sML}, s{sML}, s31''')
    l=A.lab(); l2=A.lab()
    A(f'''s_cmp_ge_u32 s{sRed}, 40
s_cbranch_scc1 {l}
v_lshrrev_b32 v42, 3, v24
v_mul_u32_u24 v42, 5120, v42
v_lshl_add_u32 v42, v38, 4, v42''')
    for i in range(8):
        A(f's_add_u32 s31, s{sPb}, {i*40960}\nbuffer_store_dwordx4 v[44:47], v42, {s(WS,4)}, s31 offen')
        A(f's_add_u32 s31, s{sPb}, {i*40960+MEMS-MEMP}\nbuffer_store_dwordx4 v[44:47], v42, {s(WS,4)}, s31 offen sc1')
    A(f's_add_u32 s31, s{sPR}, {163840}\ns_cmp_ge_u32 s63, 32\ns_cbranch_scc1 {l2}')
    for sc in(' sc1',''):
        for i in range(8): A(f'buffer_store_dwordx4 v[44:47], v{vU}, {s(WS,4)}, s{31 if i&4 else sPR} offen offset:{1024*(i&3)}{sc}')
        A(f's_branch {l}\n{l2}:' if sc else f'{l}:')
    for c in range(35):
        A(f's_waitcnt vmcnt({4*min(8,34-c)})')
        if c==10:
            l=A.lab(); A(f's_cmp_ge_u32 s{sRed}, 40\ns_cbranch_scc1 {l}\nv_mov_b32 v42, 1\ns_mov_b64 exec, 1\nbuffer_atomic_add v42, off, {s(DB,4)}, 0 offset:132 sc1\ns_mov_b64 exec, -1\n{l}:')
        for j in range(2):
            for hh in range(2):
                for mm in range(2):
                    r=8*j+4*hh+2*mm; d=W(16*c+r,2) if c<26 else v(48+r,2)
                    if c==25 or c>30: A(f'ds_read_b64_tr_b16 {d}, v30 offset:{slot(c)+(64*j+8*hh+2*mm)*32}')
                    else: A(f'ds_read_b64_tr_b16 {d}, v29 offset:{slot(c)+(32*hh+2*mm)*64+32*j}')
        A('s_waitcnt lgkmcnt(0)')
        if c+9<35: issue(c+9)
        if c>=26:
            for i in range(4): A(f'ds_write_b128 v{vL}, {v(48+4*i,4)} offset:{slot(c)+1024*i}')
            A('s_waitcnt lgkmcnt(0)')
    prof(A,1,pr)
    wait_dbg(A,132,80,vt=42)
    l=A.lab(); srd(A,WA,6,10240)
    A(f'''s_cmp_ge_u32 s{sRed}, 40
s_cbranch_scc1 {l}
v_mul_u32_u24 v42, 1280, v38
v_lshl_add_u32 v42, v26, 2, v42
s_mul_i32 s31, s{sX}, 640
s_lshl_b32 s32, s{sRed}, 4
s_add_u32 s31, s31, s32
buffer_load_dword v42, v42, {s(WA,4)}, s31 offen
s_add_u32 s31, s{sPb}, {MEMS-MEMP}
s_waitcnt vmcnt(0)
buffer_store_dword v42, v{vPub}, {s(WS,4)}, s{sPb} offen
buffer_store_dword v42, v{vPub}, {s(WS,4)}, s31 offen sc1
{l}:''')
    wait_dbg(A,128,4,vt=43)
    wait_flags(A,vFo,s(sPF),'0',vFl)
    prof(A,2,pr)
    A(f's_mov_b32 s96, s{sSpin}')
    A('s_cmp_lt_u32 s63, 32\ns_cbranch_scc1 L_rS')
    for md in 'FS': loop(A,o,md)
    A(f'L_rX:\ns_waitcnt vmcnt(0)\nv_mov_b32 v24, 64'); flag(A,24,sRF)
    prof(A,3,pr)
    if pr: A(f's_sub_u32 s31, s96, s{sSpin}\nv_mov_b32 v3, s31\ns_mov_b64 exec, 1\nbuffer_store_dword v3, off, {s(WS,4)}, s97 offset:64')
    A('s_endpgm')
def loop(A,o,md):
    sc=' sc1' if md=='S' else ''; ws=s(WS,4); RP=o.get('rp',2); pr=o.get('prof')
    def tp(k):
        if o.get('tp') and md=='F': A(f's_memtime s[{64+2*k}:{65+2*k}]')
    def tile(d,c,j):
        for hh in range(2): A(f'ds_read_b128 {v(d+4*hh,4)}, v{vL} offset:{slot(c)+2048*j+1024*hh}')
    sm=lambda d,x,w: A(f'{SM} {v(d,4)}, {v(x,4)}, {w}, v{vIx}')
    BB=[60,68,80]
    A(f'L_r{md}:')
    tile(60,26,0); tile(68,26,1)
    for i in range(12): A(f'v_mov_b64 {v(24+2*i,2)}, 0')
    t,e=A.lab(),A.lab()
    A(f's_cmp_lt_u32 s{sW}, 2\ns_cbranch_scc1 {e}_')
    if o.get('dl'): A(f's_sleep {o["dl"]}')
    A(f'{t}:')
    for i in range(3): A(f'buffer_load_dwordx4 {v(76+4*i,4)}, v{vU}, {ws}, s{sML} offen offset:{1024*i} sc1')
    for i in range(3):
        b=76+4*i
        A(f's_waitcnt vmcnt({2-i})\nds_write_b128 v{vU}, {v(b,4)} offset:{1024*i}\nv_max3_u32 v{vD}, v{b}, v{b+1}, {"0" if i==0 else v(vD)}\nv_max3_u32 v{vD}, v{b+2}, v{b+3}, v{vD}')
    A(f'v_cmp_eq_u32 vcc, -1, v{vD}\ns_cbranch_vccz {e}_'); spin(A,t)
    A(f'{e}_:\ns_waitcnt lgkmcnt(0)\ns_barrier')
    if o.get('tp'): A('s_mov_b32 s78, s64')
    tp(0)
    rdA=lambda d,k: A(f'ds_read_b128 {v(d,4)}, v{vA} offset:{1024*k}')
    for k in range(3): rdA(48+4*k,k)
    tile(80,27,0)
    for t_ in range(2): A(f'buffer_load_dwordx4 {v(88+4*t_,4)}, v{vR4}, {ws}, s{sKV} offen offset:{1024*t_}')
    def rpoll(): A(f'buffer_load_dwordx4 v[76:79], v{vW4}, {ws}, s{sMR} offen sc1\nbuffer_load_dword v{vD}, v{vW1}, {ws}, s{sMR} offen sc1')
    q=['A0','A1','A2','B2','B2']
    def wait(x):
        if x in q:
            i=len(q)-1-q[::-1].index(x); n=len(q)-1-i; del q[:i+1]; A(f's_waitcnt lgkmcnt({n})')
    for k in range(5):
        x=48+4*(k%3)
        if k==RP: rpoll()
        wait(f'A{k}')
        for j in range(2):
            i=2*k+j
            sm(24+4*j,x,W(16*k+8*j,8)); sm(32+4*j,x,W(16*(10+k)+8*j,8))
            wait(f'B{i}'); sm(40+4*j,x,v(BB[i%3],8))
            if i+3<10: tile(BB[i%3],26+(i+3)//2,(i+3)%2); q+=[f'B{i+3}']*2
        if k+3<5: rdA(x,k+3); q.append(f'A{k+3}')
    if RP>=5: rpoll()
    tp(1)
    t,e=A.lab(),A.lab()
    A(f'''{t}:
s_waitcnt vmcnt(0)
ds_write_b128 v{vW4}, v[76:79] offset:5120
ds_write_b32 v{vW1}, v{vD} offset:5120
v_max3_u32 v68, v76, v77, v{vD}
v_max3_u32 v68, v78, v79, v68
v_cmp_eq_u32 vcc, -1, v68
s_cbranch_vccz {e}'''); rpoll(); spin(A,t)
    A(f'{e}:\ns_waitcnt lgkmcnt(0)\ns_barrier'); tp(2)
    for k in range(5): rdA(48+4*k,5+k)
    l=A.lab()
    A(f's_add_u32 s31, s{sKV}, {VX-KX}')
    for t_ in range(2): A(f'buffer_load_dwordx4 {v(80+4*t_,4)}, v{vR4}, {ws}, s31 offen offset:{1024*t_}')
    A(f'v_mov_b32 v68, s{sS}'); flag(A,68,sRF)
    A(f'''s_add_u32 s32, s{sS}, 1
s_min_u32 s32, s32, 63
v_cmp_ge_u32 vcc, s32, v{vFl}
s_add_u32 s{sKV}, s{sKV}, {1<<18}
s_cbranch_vccnz L_rP{md}
L_rPb{md}:
buffer_load_dword v{vD}, v{vWm}, {ws}, s{sKV} offen
buffer_load_dword v{vFl}, v{vFo}, {ws}, s{sPF} offen sc1''')
    for k in range(5):
        A(f's_waitcnt lgkmcnt({4-k})')
        for j in range(2): sm(24+4*j,48+4*k,W(16*(5+k)+8*j,8))
    ks=[lambda k=k,j=j: sm(32+4*j,48+4*k,W(16*(15+k)+8*j,8)) for k in range(5) for j in range(2)]
    vs=[lambda k=k,j=j: sm(40+4*j,48+4*k,W(16*(20+k)+8*j,8)) for k in range(5) for j in range(2)]
    def nx(L,n=1):
        for _ in range(n): L.pop(0)()
    cvt=lambda d,x,y: A(f'v_cvt_pk_bf16_f32 v{d}, v{x}, v{y}')
    add=lambda d,x,y: A(f'v_add_f32 v{d}, v{x}, v{y}')
    nx(ks,3); A('s_nop 3')
    add(24,24,25); add(25,26,27); nx(ks); add(26,28,29); add(27,30,31); nx(ks)
    A(f'v_mul_f32 v24, s{sSc}, v24\nv_mul_f32 v25, s{sSc}, v25'); nx(ks)
    A(f'v_mul_f32 v26, s{sSc}, v26\nv_mul_f32 v27, s{sSc}, v27'); nx(ks)
    cvt(68,24,25); cvt(69,26,27); nx(ks)
    A(f's_add_u32 s{sML}, s{sML}, 5120')
    A(f'{M16} v[24:27], v[68:69], {v(SEL,2)}, 0\n{M16} v[28:31], v[68:69], {v(SEL+2,2)}, 0')
    nx(ks,2); nx(vs,2)
    A(f's_add_u32 s{sMR}, s{sMR}, 5120\ns_add_u32 s{sPb}, s{sPb}, 5120')
    cvt(72,24,25); cvt(73,26,27); cvt(74,28,29); cvt(75,30,31)
    add(32,32,33); add(33,34,35)
    A(f'{M32} v[24:27], v[88:91], v[72:75], 0')
    add(34,36,37); add(35,38,39)
    A(f'{M32} v[28:31], v[92:95], v[72:75], 0')
    cvt(70,32,33); cvt(71,34,35)
    A(f'{M16} v[32:35], v[70:71], {v(SEL,2)}, 0\n{M16} v[36:39], v[70:71], {v(SEL+2,2)}, 0')
    tile(88,31,0); nx(vs,2)
    for i in range(4): A(f'v_cndmask_b32 v{24+i}, v{24+i}, v{28+i}, {s(sPar,2)}')
    cvt(76,32,33); cvt(77,34,35); cvt(78,36,37); cvt(79,38,39)
    A(f'ds_write_b128 v{vW4}, v[24:27]')
    A(f'{M32} v[32:35], v[76:79], v[72:75], 0')
    nx(vs,3)
    l=A.lab()
    A(f's_cmp_lg_u32 s{sX}, 0\ns_cbranch_scc1 {l}\nbuffer_store_dwordx4 v[76:79], v{vR4}, {ws}, s{sKM} offen sc1\ns_add_u32 s{sKM}, s{sKM}, {1<<17}\n{l}:')
    A(f'v_cndmask_b32 v68, v32, v34, {s(sPar,2)}\nds_write_b32 v{vW1}, v68')
    nx(vs,3)
    A('s_waitcnt lgkmcnt(0)\ns_barrier'); tp(3)
    for i in range(4): A(f'ds_read_b128 {v(48+4*i,4)}, v{vR4} offset:{1024*i}')
    A(f'ds_read2st64_b32 v[24:25], v{vR1} offset0:0 offset1:1\nds_read2st64_b32 v[26:27], v{vR1} offset0:2 offset1:3')
    tile(72,31,1)
    add(40,40,41); add(41,42,43); add(42,44,45); add(43,46,47); cvt(70,40,41); cvt(71,42,43)
    l=A.lab()
    A(f's_cmp_eq_u32 s{sX}, 0\ns_cbranch_scc1 {l}\nbuffer_store_dwordx2 v[70:71], v{vOW}, {ws}, s{sKM} offen sc1\ns_add_u32 s{sKM}, s{sKM}, {1<<16}\n{l}:')
    A(f's_cmp_eq_u32 s{sS}, 63\ns_cbranch_scc1 L_rX')
    pk=lambda d,x,y: A(f'v_pk_add_f32 {v(d,2)}, {v(x,2)}, {v(y,2)}')
    A('v_mov_b32 v29, 0\nv_mov_b32 v30, 0\ns_waitcnt lgkmcnt(6)'); pk(48,48,52); pk(50,50,54)
    A('s_waitcnt lgkmcnt(4)'); pk(56,56,60); pk(58,58,62); pk(64,48,56); pk(66,50,58)
    A('s_waitcnt lgkmcnt(2)'); pk(24,24,26); add(68,24,25)
    tile(48,32,0); tile(56,32,1)
    A(f'L_rE{md}:')
    for i in range(4): A(f'v_exp_f32 v{32+i}, v{64+i}')
    A('v_exp_f32 v36, v68'); cvt(32,32,33); cvt(33,34,35)
    dpp=lambda d,x,p: A(f'v_mov_b32_dpp v{d}, v{x} quad_perm:[{p},{p},{p+2},{p+2}] row_mask:0xf bank_mask:0xf')
    dpp(37,36,0); dpp(38,36,1); dpp(24,32,0); dpp(25,33,0); dpp(26,32,1); dpp(27,33,1); cvt(28,37,38); cvt(31,37,38)
    A(f'''{M32} v[32:35], {v(ONE,4)}, v[24:27], 0
v_max3_f32 v69, |v64|, |v65|, |v66|
v_max3_f32 v69, |v67|, |v68|, v69
s_waitcnt vmcnt(4)
{M32} v[36:39], v[80:83], v[24:27], 0
v_cmp_nge_f32 vcc, s{sLim}, v69
s_cbranch_vccnz L_rM{md}
L_rMb{md}:
{M32} v[40:43], v[84:87], v[24:27], 0
v_mov_b64 v[44:45], 0
{M16} v[32:35], {v(ONE,2)}, v[28:29], v[32:35]
v_mov_b64 v[46:47], 0
v_mov_b64 v[64:65], 0
{M16} v[36:39], v[70:71], v[28:29], v[36:39]
v_mov_b64 v[66:67], 0
v_mov_b64 v[24:25], 0
{M16} v[40:43], v[70:71], v[30:31], v[40:43]''')
    tile(80,33,0)
    A('v_mov_b64 v[26:27], 0\nv_rcp_f32 v32, v32')
    for i in range(2,4): A(f'v_mov_b64 {v(24+2*i,2)}, 0')
    for i in range(4): A(f'v_cndmask_b32 v{40+i}, v{36+i}, v{40+i}, {s(sPar,2)}')
    A('v_pk_mul_f32 v[40:41], v[40:41], v[32:33] op_sel_hi:[1,0]\nv_pk_mul_f32 v[42:43], v[42:43], v[32:33] op_sel_hi:[1,0]')
    cvt(40,40,41); cvt(41,42,43)
    A(f'ds_write_b64 v{vOW}, v[40:41]\nv_mov_b64 v[68:69], 0\nv_mov_b64 v[70:71], 0\ns_waitcnt lgkmcnt(0)\ns_barrier'); tp(4)
    A(f'ds_read_b128 v[32:35], v{vR4} offset:10240\nds_read_b128 v[36:39], v{vR4} offset:11264')
    for n in range(1,5): A(f's_add_u32 s{31+n}, s{sPS}, {8192*n}')
    acc={1:44,2:64,0:24,3:28,4:68}
    def post(n):
        b=acc[n]; add(b,b,b+1); add(b+1,b+2,b+3); cvt(b,b,b+1)
        A(f'buffer_store_dword v{b}, v{vP}, {ws}, s{31+n if n else sPS} offen{sc}')
    A('s_waitcnt lgkmcnt(1)'); sm(44,32,v(88,8)); tile(88,33,1)
    A('s_waitcnt lgkmcnt(2)'); sm(44,36,v(72,8)); tile(72,34,0)
    sm(64,32,v(48,8)); tile(48,34,1); sm(64,36,v(56,8))
    sm(24,32,W(400,8)); sm(24,36,W(408,8)); post(1)
    sm(28,32,v(80,8)); A('s_waitcnt lgkmcnt(4)'); sm(28,36,v(88,8)); post(2)
    A('s_waitcnt lgkmcnt(2)'); sm(68,32,v(72,8)); A('s_waitcnt lgkmcnt(0)'); sm(68,36,v(48,8))
    post(0); post(3); post(4); tp(5)
    t,e,x=A.lab(),A.lab(),A.lab()
    A(f'''s_add_u32 s{sPS}, s{sPS}, s{sPD}
s_add_u32 s{sS}, s{sS}, 1
s_cmp_ge_u32 s{sRed}, 40
s_cbranch_scc1 {x}
v_mov_b32 v72, 0x3f80
v_cndmask_b32 v72, v72, 1.0, {s(sPar,2)}''')
    for i in range(4): A(f'v_cndmask_b32 v{76+i}, 0, v72, {s(sM+2*i,2)}')
    A(f'v_mov_b64 v[72:73], -1\nv_mov_b64 v[74:75], -1\ns_add_u32 s31, s{sPb}, {MEMS-MEMP}\n{t}:')
    for i in range(4): A(f'buffer_load_dwordx4 {v(48+4*i,4)}, v{vU}, {ws}, s{sPR} offen offset:{1024*i} sc1')
    for i in range(4):
        b=48+4*i
        A(f's_waitcnt vmcnt({3-i})\n{M32} v[64:67], {v(b,4)}, v[76:79], {"v[64:67]" if i else 0}\nv_max3_u32 v{vD}, v{b}, v{b+1}, {"0" if i==0 else v(vD)}\nv_max3_u32 v{vD}, v{b+2}, v{b+3}, v{vD}')
    A(f'v_cmp_eq_u32 vcc, -1, v{vD}\ns_cbranch_vccz {e}'); spin(A,t)
    A(f'{e}:'); add(64,64,65); add(65,66,67); cvt(64,64,65)
    if md=='F': A(f'buffer_store_dword v64, v{vPub}, {ws}, s{sPb} offen')
    A(f'buffer_store_dword v64, v{vPub}, {ws}, s31 offen sc1')
    tp(6)
    if md=='F': A(f's_add_u32 s31, s{sPb}, 5120\ns_cmp_lt_u32 s{sS}, 63\ns_cselect_b32 s31, s31, 0x7ff00000\nbuffer_store_dword v72, v{vPub}, {ws}, s31 offen')
    for i in range(4): A(f'buffer_store_dwordx4 v[72:75], v{vU}, {ws}, s{sPR} offen offset:{1024*i}{sc}')
    A(f's_add_u32 s{sPR}, s{sPR}, s{sPD}\n{x}:\ns_sub_u32 s{sPD}, 0, s{sPD}')
    if o.get('tp') and md=='F':
        l=A.lab(); A(f's_cmp_lg_u32 s{sS}, {o["tp"]}\ns_cbranch_scc1 {l}\ns_waitcnt lgkmcnt(0)\ns_mov_b64 exec, 1')
        for k in range(8): A(f'v_mov_b32 v3, s{64+2*k}\nbuffer_store_dword v3, off, {ws}, s97 offset:{32+4*k}')
        A(f's_mov_b64 exec, -1\n{l}:')
    A(f's_branch L_r{md}')
    A(f'L_rP{md}:'); wait_flags(A,vFo,s(sPF),'s32',vFl); A(f's_branch L_rPb{md}')
    A(f'''L_rM{md}:
s_cmp_eq_u32 s{sSl}, s{sS}
s_cbranch_scc1 L_rMb{md}
s_mov_b32 s{sSl}, s{sS}
v_max3_f32 v69, v64, v65, v66
v_max3_f32 v69, v67, v68, v69
v_mov_b32_dpp v44, v69 quad_perm:[1,0,3,2] row_mask:0xf bank_mask:0xf
v_max_f32 v69, v69, v44
v_mov_b32 v44, v69
v_permlane16_swap_b32 v44, v69
v_max_f32 v69, v69, v44
v_mov_b32 v44, v69
v_permlane32_swap_b32 v44, v69
v_max_f32 v69, v69, v44''')
    for i in range(5): A(f'v_sub_f32 v{64+i}, v{64+i}, v69')
    A(f's_branch L_rE{md}')
```

```python
from common import *
def roleT(A,o):
    pr=o.get('prof'); ws=s(WS,4)
    A(f's_cmp_ge_u32 s{sB}, 32\ns_cbranch_scc1 L_t2')
    Q,K,V,KMr,VMr,S,O,P,G=16,48,80,112,128,136,160,224,240
    vRF,vG,vOB=4,5,6
    sS,sQ,sKM,sVM,sG,sOB,sRFo,sTF,sSc=32,33,34,35,36,37,38,39,40
    A(f'''v_and_b32 v2, 15, v0
v_lshrrev_b32 v3, 4, v0
v_and_b32 v{vRF}, 7, v0
v_lshlrev_b32 v{vRF}, 2, v{vRF}
v_lshlrev_b32 v{vG}, 1, v2
v_lshrrev_b32 v7, 2, v2
v_lshlrev_b32 v{vOB}, 15, v7
v_lshl_add_u32 v{vOB}, v3, 6, v{vOB}
v_and_b32 v7, 3, v0
v_lshl_add_u32 v{vOB}, v7, 4, v{vOB}
v_lshlrev_b32 v3, 2, v3
v_mov_b32 v8, 0xff7fffff
v_mov_b32 v{P+2}, 0
v_mov_b32 v{P+3}, 0
s_mov_b32 s{sS}, s{sW}
s_lshl_b32 s31, s{sW}, 5
s_add_u32 s31, s31, s{sB}
s_lshl_b32 s{sQ}, s31, 13
s_add_u32 s{sQ}, s{sQ}, {QX}
s_lshl_b32 s{sKM}, s31, 12
s_add_u32 s{sKM}, s{sKM}, {KM}
s_lshl_b32 s{sVM}, s31, 11
s_add_u32 s{sVM}, s{sVM}, {VM}
s_lshl_b32 s{sTF}, s31, 2
s_add_u32 s{sTF}, s{sTF}, {T1F}
s_lshl_b32 s{sG}, s{sW}, 6
s_add_u32 s{sG}, s{sG}, {AVT+21*4096}
s_lshl_b32 s{sOB}, s{sW}, 18
s_lshl_b32 s31, s{sB}, 10
s_add_u32 s{sOB}, s{sOB}, s31
s_add_u32 s{sOB}, s{sOB}, {OB}
s_lshl_b32 s{sRFo}, s{sB}, 7
s_add_u32 s{sRFo}, s{sRFo}, {RF}
s_mov_b32 s{sSc}, 0x3e0293ee''')
    for r in range(4): A(f'v_add_u32 v7, {r}, v3\nv_cmp_le_u32 s[{42+2*r}:{43+2*r}], v7, v2')
    for t in range(2): A(f'v_mov_b32 v{P+8+4*t+1}, 0\nv_mov_b32 v{P+8+4*t+2}, 0')
    A('L_t1:')
    for m,R in((0,Q),(1,K),(2,V)):
        for h in range(2):
            A(f's_add_u32 s31, s{sQ}, {(m<<24)+4096*h}')
            for i in range(4): A(f'buffer_load_dwordx4 {v(R+16*h+4*i,4)}, v1, {ws}, s31 offen offset:{1024*i}')
    for t in range(2): A(f'buffer_load_ushort v{G+t}, v{vG}, {ws}, s{sG} offen offset:{32*t}')
    A('s_waitcnt vmcnt(10)')
    mf='v_mfma_f32_16x16x32_bf16'
    for w in range(4):
        for n,(kt,tt) in enumerate(((0,0),(0,1),(1,1))):
            d=v(S+4*n,4); A(f'{mf} {d}, {v(K+8*w+4*kt,4)}, {v(Q+8*w+4*tt,4)}, {d if w else 0}')
    wait_flags(A,vRF,f's{sRFo}',f's{sS}',7,slp=2)
    for w in range(4): A(f'buffer_load_dwordx4 {v(KMr+4*w,4)}, v1, {ws}, s{sKM} offen offset:{1024*w} sc1')
    for w in range(2): A(f'buffer_load_dwordx4 {v(VMr+4*w,4)}, v1, {ws}, s{sVM} offen offset:{1024*w} sc1')
    for n in(0,2):
        for r in range(4): A(f'v_cndmask_b32 v{S+4*n+r}, v8, v{S+4*n+r}, s[{42+2*r}:{43+2*r}]')
    for t in range(2): A(f'v_lshlrev_b32 v{G+t}, 16, v{G+t}\nv_mul_f32 v{G+t}, 0x3fb8aa3b, v{G+t}\nv_exp_f32 v{G+t}, v{G+t}')
    A(f'''v_max3_f32 v10, v{S}, v{S+1}, v{S+2}
v_max3_f32 v11, v{S+4}, v{S+5}, v{S+6}
v_max_f32 v10, v10, v{S+3}
v_max3_f32 v11, v11, v{S+7}, v{S+8}
v_add_f32 v{G}, 1.0, v{G}
v_max3_f32 v11, v11, v{S+9}, v{S+10}
v_add_f32 v{G+1}, 1.0, v{G+1}
v_max_f32 v11, v11, v{S+11}''')
    for w in range(4):
        A(f's_waitcnt vmcnt({5-w})')
        for t in range(2):
            d=v(S+12+4*t,4); A(f'{mf} {d}, {v(KMr+4*w,4)}, {v(Q+8*w+4*t,4)}, {d if w else 0}')
    def xred(op):
        for sw in('16','32'):
            for t in range(2): A(f'v_mov_b32 v{12+t}, v{10+t}')
            for t in range(2): A(f'v_permlane{sw}_swap_b32 v{10+t}, v{12+t}')
            for t in range(2): A(f'{op} v{10+t}, v{10+t}, v{12+t}')
    for t in range(2): A(f'v_max3_f32 v{10+t}, v{10+t}, v{S+12+4*t}, v{S+14+4*t}')
    xred('v_max_f32')
    for t in range(2): A(f'v_mul_f32 v{10+t}, s{sSc}, v{10+t}')
    L=[[S+i for i in range(4)]+[S+12,S+14],[S+4+i for i in range(8)]+[S+16,S+18]]
    for t in range(2):
        for x in L[t]: A(f'v_fma_f32 v{x}, v{x}, s{sSc}, -v{10+t}')
    for t in range(2):
        for x in L[t]: A(f'v_exp_f32 v{x}, v{x}')
    for i in range(2): A(f'v_cvt_pk_bf16_f32 v{P+i}, v{S+2*i}, v{S+2*i+1}')
    for i in range(4): A(f'v_cvt_pk_bf16_f32 v{P+4+i}, v{S+4+2*i}, v{S+5+2*i}')
    for t in range(2):
        for j in(0,3): A(f'v_cvt_pk_bf16_f32 v{P+8+4*t+j}, v{S+12+4*t}, v{S+14+4*t}')
    for t in range(2):
        for i in range(8): A(f'{mf} {v(O+32*t+4*i,4)}, {v(V+4*i,4)}, {v(P+4*t,4)}, 0')
        A(f'v_add_f32 v{10+t}, v{L[t][0]}, v{L[t][1]}')
        for x in L[t][2:]: A(f'v_add_f32 v{10+t}, v{10+t}, v{x}')
    A('s_waitcnt vmcnt(0)')
    for t in range(2):
        for i in range(8):
            d=v(O+32*t+4*i,4); A(f'v_mfma_f32_16x16x16_bf16 {d}, {v(VMr+2*(i>>1),2)}, {v(P+8+4*t+2*(i&1),2)}, {d}')
        if t==0:
            xred('v_add_f32')
            for u in range(2): A(f'v_mul_f32 v{10+u}, v{10+u}, v{G+u}')
            for u in range(2): A(f'v_rcp_f32 v{10+u}, v{10+u}')
    for t in range(2):
        for w in range(4):
            b=O+32*t+8*w
            for i in range(8): A(f'v_mul_f32 v{b+i}, v{b+i}, v{10+t}')
            for i in range(4): A(f'v_cvt_pk_bf16_f32 v{b+i}, v{b+2*i}, v{b+2*i+1}')
            A(f'buffer_store_dwordx4 {v(b,4)}, v{vOB}, {ws}, s{sOB} offen offset:{256*w} sc1')
        A(f's_add_u32 s{sOB}, s{sOB}, {(1<<17) if t==0 else (7<<17)}')
    A(f'''s_add_u32 s{sS}, s{sS}, 4
v_mov_b32 v7, s{sS}
s_add_u32 s{sQ}, s{sQ}, {1<<20}
s_add_u32 s{sKM}, s{sKM}, {1<<19}
s_add_u32 s{sVM}, s{sVM}, {1<<18}
s_add_u32 s{sG}, s{sG}, 256
s_waitcnt vmcnt(0)''')
    flag(A,7,sTF)
    A(f's_cmp_lt_u32 s{sS}, 64\ns_cbranch_scc1 L_t1')
    prof(A,5,pr)
    A('s_endpgm')
    def W(n,k): return a(n,k) if n<256 else v(16+n-256,k)
    B,ACC,RD=56,204,212
    vD,vT,vT2,vOl,vAl,vSl,vJ,vF,vQ,vO,vA,vS=4,5,6,7,8,9,10,11,12,13,14,15
    sCB,sRep,sL,sG,sG2,sS0,sN,sO,sA=32,33,34,35,36,37,38,39,40
    A('L_t2:'); srd(A,WA,10,5242880); srd(A,WB,4,819200); srd(A,OS,13,2621440)
    A(f'''s_sub_u32 s31, s{sB}, 32
s_mul_i32 s{sRep}, s31, 3277
s_lshr_b32 s{sRep}, s{sRep}, 16
s_mul_i32 s{sCB}, s{sRep}, 20
s_sub_u32 s{sCB}, s31, s{sCB}
s_lshl_b32 s{sCB}, s{sCB}, 6
s_mul_i32 s{sL}, s{sW}, 40960
s_mul_i32 s{sG}, s{sW}, {1024*1280}
s_add_u32 s{sG}, s{sG}, s{sCB}
s_mul_i32 s{sG2}, s{sW}, {160*1280}
s_add_u32 s{sG2}, s{sG2}, s{sCB}
v_lshrrev_b32 v2, 2, v0
v_and_b32 v3, 3, v0
v_mul_u32_u24 v{vD}, 1280, v2
v_lshl_add_u32 v{vD}, v3, 4, v{vD}
v_add_u32 v{vT}, s{sL}, v1
v_lshrrev_b32 v{vQ}, 4, v0
v_lshl_add_u32 v{vT2}, v{vQ}, 8, v{vT}
v_and_b32 v{vJ}, 3, v2
v_lshlrev_b32 v{vOl}, 18, v{vJ}
v_lshl_add_u32 v{vOl}, v{vQ}, 6, v{vOl}
v_lshl_add_u32 v{vOl}, v3, 4, v{vOl}
v_lshl_add_u32 v2, v{vJ}, 5, v3
v_mul_u32_u24 v2, 1280, v2
v_lshl_add_u32 v{vAl}, v{vQ}, 4, v2
v_lshlrev_b32 v{vF}, 3, v0''')
    def issue(k):
        for i in range(2):
            if k<32: dma(A,vD,WA,sG,(32*k+16*i)*1280,sL,(k%20)*2048+i*1024)
            else: dma(A,vD,WB,sG2,(32*(k-32)+16*i)*1280,sL,(k%20)*2048+i*1024)
    for k in range(20): issue(k)
    for k in range(37):
        A(f's_waitcnt vmcnt({2*min(19,36-k)})')
        for ct in range(2):
            for mm in range(2):
                A(f'ds_read_b64_tr_b16 {W((2*k+ct)*4+2*mm,2)}, v{vT if k<32 else vT2} offset:{(k%20)*2048+ct*8+mm*(1024 if k<32 else 256)}')
        if k+20<37: A('s_waitcnt lgkmcnt(0)'); issue(k+20)
    A(f'''v_lshlrev_b32 v2, 2, v0
s_mov_b32 s31, {AAF}''')
    wait_flags(A,2,'s31',0,B,n=3,slp=4)
    A(f'''s_mov_b32 s{sS0}, 0
s_lshl_b32 s{sO}, s{sRep}, 15
s_lshl_b32 s31, s{sW}, 13
s_add_u32 s{sO}, s{sO}, s31
s_add_u32 s{sO}, s{sO}, {OB}
s_mul_i32 s{sA}, s{sRep}, 5120
s_add_u32 s{sCB}, s{sCB}, s{sA}
s_mul_i32 s31, s{sW}, 320
s_add_u32 s{sA}, s{sA}, s31
s_add_u32 s{sA}, s{sA}, {AO}
s_lshl_b32 s31, s{sW}, 11
v_add_u32 v{vT}, s31, v1
v_mov_b32 v{vD}, 0x7ff00000
v_mov_b32 v{vT2}, 0
s_mov_b32 s41, {T1F}
s_waitcnt lgkmcnt(0)
s_barrier''')
    prof(A,4,pr)
    A(f'''L_t2L:
s_cmp_lg_u32 s{sW}, 0
s_cbranch_scc1 L_t2B
L_t2P:
buffer_load_dwordx2 v[2:3], v{vF}, {ws}, s41 offen sc1
s_mov_b32 s{sN}, 0
s_waitcnt vmcnt(0)
v_min_u32 v2, v2, v3
v_max_u32 v2, v2, v{vQ}
v_subrev_u32 v2, s{sS0}, v2''')
    for j in range(4): A(f'v_cmp_ge_u32 vcc, {j}, v2\ns_cmp_eq_u64 vcc, 0\ns_addc_u32 s{sN}, s{sN}, 0')
    A(f's_cmp_lg_u32 s{sN}, 0\ns_cbranch_scc1 L_t2G\ns_sleep 4'); spin(A,'L_t2P')
    A(f'''s_mov_b32 s{sN}, 1
L_t2G:
v_mov_b32 v2, s{sN}
ds_write_b32 v{vT2}, v2 offset:8192
s_waitcnt lgkmcnt(0)
L_t2B:
s_barrier
ds_read_b32 v2, v{vT2} offset:8192
s_add_u32 s31, s{sO}, 4096
s_waitcnt lgkmcnt(0)
v_cmp_gt_u32 vcc, v2, v{vJ}
v_readfirstlane_b32 s{sN}, v2
v_cndmask_b32 v{vO}, v{vD}, v{vOl}, vcc
v_cndmask_b32 v{vA}, v{vD}, v{vAl}, vcc''')
    for k in range(37):
        if k<32: A(f'buffer_load_dwordx4 {v(B+4*k,4)}, v{vO}, {ws}, s{sO if k<16 else 31} offen offset:{256*(k%16)}')
        else: A(f'buffer_load_dwordx4 {v(B+4*k,4)}, v{vA}, {ws}, s{sA} offen offset:{64*(k-32)}')
    for k in range(37):
        A(f's_waitcnt vmcnt({36-k})')
        for ct in range(2):
            d=v(ACC+4*ct,4); A(f'{mf} {d}, {W((2*k+ct)*4,4)}, {v(B+4*k,4)}, {d if k else 0}')
    A(f'''s_lshl_b32 s31, s{sN}, 18
s_add_u32 s{sO}, s{sO}, s31
s_mul_i32 s31, s{sN}, {32*1280}
s_add_u32 s{sA}, s{sA}, s31
s_add_u32 s{sS0}, s{sS0}, s{sN}
ds_write_b128 v{vT}, {v(ACC,4)}
ds_write_b128 v{vT}, {v(ACC+4,4)} offset:1024
s_waitcnt lgkmcnt(0)
s_barrier
s_cmp_lg_u32 s{sW}, 1
s_cbranch_scc1 L_t2N''')
    for i in range(8): A(f'ds_read_b128 {v(RD+4*i,4)}, v1 offset:{1024*i}')
    A('s_waitcnt lgkmcnt(0)')
    for w in range(1,4):
        for i in range(8): A(f'v_add_f32 v{RD+i}, v{RD+i}, v{RD+8*w+i}')
    for i in range(4): A(f'v_cvt_pk_bf16_f32 v{RD+i}, v{RD+2*i}, v{RD+2*i+1}')
    A(f'''buffer_store_dwordx4 {v(RD,4)}, v{vA}, {s(OS,4)}, s{sCB} offen
s_add_u32 s{sCB}, s{sCB}, s31
L_t2N:
s_cmp_lt_u32 s{sS0}, 64
s_cbranch_scc1 L_t2L''')
    prof(A,5,pr)
```

```python
import sys,json,os
sys.path.insert(0,os.path.dirname(os.path.abspath(__file__)))
from common import *
from roleP import roleP
from roleR import roleR
N='gated_mix__grouped_kv_mqa__memory_aug_recurrent_mem_tr__prompt'
def gen(o):
    A=Asm(); prologue(A,o); roleR(A,o); roleP(A,o)
    if o.get('stage',9)>1:
        from roleA import roleA; roleA(A,o)
    if o.get('stage',9)>2:
        from roleT import roleT; roleT(A,o)
    A('L_exit:\ns_endpgm')
    ref=open('cdna_kernels/%s.s.ref'%N).read().split('\n')
    head=[l for l in ref if l.startswith(';') and '@launch' not in l]
    return '\n'.join(head+['; @launch grid=(256,1,1) block=(256,1,1) lds=163840','.amdgcn_target "amdgcn-amd-amdhsa--gfx950"','.text',f'.globl {N}_kernel','.p2align 8',f'.type {N}_kernel,@function',f'{N}_kernel:']+fix(A.l)+[f'''.section .rodata,"a"
.p2align 6
.amdhsa_kernel {N}_kernel
  .amdhsa_next_free_vgpr 512
  .amdhsa_next_free_sgpr 102
  .amdhsa_accum_offset 256
  .amdhsa_group_segment_fixed_size 0
  .amdhsa_kernarg_size 128
  .amdhsa_user_sgpr_count 2
  .amdhsa_user_sgpr_kernarg_segment_ptr 1
  .amdhsa_system_sgpr_workgroup_id_x 1
.end_amdhsa_kernel
'''])
if __name__=='__main__':
    o=dict(rp=0,dl=3,da=4,db=2,rm=1,lp=2,g3=3,g1=1,dm=1); o.update((k,int(x)) for k,x in (y.split('=') for y in sys.argv[2:]))
    open(sys.argv[1],'w').write(gen(o))
```

```python
import re
TRANS=('v_exp_','v_log_','v_rcp_','v_rsq_','v_sqrt_','v_sin_','v_cos_')
def regs(op):
    op=op.strip().lstrip('-').strip('|')
    m=re.fullmatch(r'([vas])(\d+)',op)
    if m: return {(m.group(1),int(m.group(2)))}
    m=re.fullmatch(r'([vas])\[(\d+):(\d+)\]',op)
    if m: return {(m.group(1),i) for i in range(int(m.group(2)),int(m.group(3))+1)}
    if op in('vcc','vcc_lo','vcc_hi'): return {('s','vcc')}
    if op in('exec','exec_lo','exec_hi'): return {('s','exec')}
    if op=='m0': return {('s','m0')}
    return set()
class I:
    def __init__(s,line):
        s.line=line; t=line.split(';')[0].strip(); s.label=None; s.kind='x'; s.ws=1
        s.d=set(); s.r=set(); s.ab=set(); s.c=set(); s.p=0; s.tgt=None; s.mn=''
        if not t or t.startswith('.'): s.ws=0; return
        if t.endswith(':'): s.label=t[:-1]; s.ws=0; return
        mn,_,rest=t.partition(' '); s.mn=mn
        ops=[o.strip() for o in re.split(r',(?![^\[]*\])',rest)] if rest else []
        if ops: ops[-1:]=ops[-1].split()
        R=[regs(o) for o in ops]; U=lambda l:set().union(*l) if l else set()
        if mn.startswith(('v_mfma','v_smfmac')):
            s.kind='m'; s.p=8 if '32x32' in mn else 4; s.d=R[0]
            if 'smfmac' in mn: s.ab=R[1]|R[2]|R[3]; s.c=R[0]
            else: s.ab=R[1]|R[2]; s.c=R[3]
            s.r=s.ab|s.c
        elif mn.startswith('v_'):
            s.kind='v'; s.d=set(R[0]); s.r=U(R[1:])
            if 'swap' in mn: s.d|=R[1]; s.r|=R[0]
            if '_co_' in mn: s.d|=R[1]
            if mn.startswith(('v_fmac','v_pk_fmac','v_writelane','v_dot')) or 'dpp' in mn: s.r|=R[0]
            if mn.startswith('v_cmpx'): s.d|={('s','exec')}
            s.dpp='dpp' in mn or 'permlane' in mn
            s.tr=mn.startswith(TRANS); s.rl=mn.startswith(('v_readlane','v_readfirstlane','v_writelane'))
        elif mn.startswith(('buffer_','global_','ds_')):
            s.kind='mem'; s.lds=' lds' in t
            ld=('load' in mn or 'read' in mn or 'permute' in mn) and not s.lds
            if ld: s.d=R[0]; s.r=U(R[1:])
            else:
                s.r=U(R)
                if 'atomic' in mn and 'sc0' in t: s.d=R[0]
            s.wide=R[0] if (mn.startswith('buffer_store') and mn[-2:] in('x3','x4')) else set()
        elif mn.startswith('s_'):
            s.kind='s'
            if mn=='s_nop': s.ws=int(ops[0])+1
            elif 'branch' in mn: s.tgt=ops[0]
            elif mn.startswith(('s_cmp','s_waitcnt','s_barrier','s_bitcmp','s_sleep','s_setprio','s_endpgm')): s.r=U(R)
            else: s.d=R[0] if R else set(); s.r=U(R[1:])
            if 'saveexec' in mn: s.d=s.d|{('s','exec')}
def need(p,c):
    n=0; vg=lambda S:{x for x in S if x[0]!='s'}; sg=lambda S:{x for x in S if x[0]=='s'}
    if p.kind=='m':
        big=8 if p.p==4 else 12
        if c.kind=='m':
            if p.d&c.ab: n=max(n,big)
            if p.d&c.c and not(p.d==c.c and p.mn==c.mn): n=max(n,big-2)
            if p.d&c.d and not p.d&c.c: n=max(n,big-2 if p.d!=c.d else 0)
        elif c.kind in('v','mem'):
            if p.d&(c.r|c.d): n=max(n,big)
            if c.kind=='v' and p.c&c.d: n=max(n,3 if p.p==4 else 7)
    elif p.kind=='v':
        if c.kind=='m':
            if vg(p.d)&c.r: n=2
            if ('s','exec') in p.d: n=4
        elif c.kind=='v':
            if p.tr and vg(p.d)&c.r: n=1
            if c.rl and vg(p.d)&c.r: n=max(n,1)
            if c.dpp and vg(p.d)&c.r: n=2
            if sg(p.d)&c.r: n=max(n,4 if c.rl else 2)
            if ('s','exec') in p.d and (c.dpp or c.rl): n=5
        elif c.kind=='mem':
            if sg(p.d)&c.r: n=5
    elif p.kind=='mem':
        if p.wide&c.d: n=2
    elif p.kind=='s':
        if ('s','m0') in p.d and c.kind=='mem' and c.lds: n=1
    return n
def fix(lines):
    L=[I(l) for l in lines]; lab={x.label:i for i,x in enumerate(L) if x.label}
    out=[]; hist=[]; nn=0
    def req(hist,c,extra=0):
        m=0
        for i,p in enumerate(hist):
            n=need(p,c)
            if n<=0: continue
            occ=lambda y:(y.p//2 if y.mn.endswith(('16x16x16_bf16','32x32x8_bf16')) else y.p)
            T=1; busy=occ(p) if p.kind=='m' else 0
            for y in hist[i+1:]:
                if y.kind=='m': T=max(T,busy); busy=T+occ(y)
                T+=y.ws
            T+=extra
            if c.kind=='m' and busy-1>=n: continue
            m=max(m,n-(T-1))
        return m
    for i,x in enumerate(L):
        if x.ws==0: out.append(x.line); continue
        m=req(hist,x)
        if x.tgt:
            d=1; j=lab[x.tgt]
            while d<12 and j<len(L):
                y=L[j]
                if y.ws: m=max(m,req(hist,y,d)); d+=y.ws
                if y.mn in('s_branch','s_endpgm'): break
                j+=1
        if m>0:
            nop=I('s_nop %d'%(m-1)); out.append('  '+nop.line); hist.append(nop); nn+=m
        out.append(x.line); hist.append(x); hist=hist[-14:]
        if x.mn in('s_branch','s_endpgm'): hist=[]
    return out
class Asm:
    def __init__(s): s.l=[]; s.n=0
    def __call__(s,t):
        for x in t.split('\n'):
            x=x.strip()
            if x: s.l.append(x if x.endswith(':') else '  '+x)
    def lab(s,p='L'): s.n+=1; return '%s_%d'%(p,s.n)
def v(i,n=1): return 'v%d'%i if n==1 else 'v[%d:%d]'%(i,i+n-1)
def a(i,n=1): return 'a%d'%i if n==1 else 'a[%d:%d]'%(i,i+n-1)
def s(i,n=1): return 's%d'%i if n==1 else 's[%d:%d]'%(i,i+n-1)
```

```python
from common import *
def W(n,k): return a(n,k) if n<256 else v(112+n-256,k)
def roleP(A,o):
    pr=o.get('prof')
    vS,vT,vX,vRA,vRB,vE,vBias,vF,vRE=4,5,6,7,8,9,10,11,12
    XF=16; ACC=40; ST=72; EA=88
    sQ,sCG,sM,sG,sL,sRS,sXG,sXL,sOut,sFl,sJ,sES,sEO,sSc,sEN,sXB=32,33,34,35,36,37,38,39,40,41,42,43,44,45,46,47
    A(f'''L_bulk:
s_lshl_b32 s97, s{sB}, 2
s_add_u32 s97, s97, s{sW}
s_lshl_b32 s97, s97, 8
s_add_u32 s97, s97, {PROF}''')
    prof(A,0,pr)
    l=A.lab()
    A(f's_cmp_lg_u32 s{sB}, 0\ns_cbranch_scc1 {l}_\ns_cmp_lg_u32 s{sW}, 0\ns_cbranch_scc1 {l}\ns_mov_b64 exec, 0xff\ns_mov_b32 s32, -1\ns_mov_b32 s33, -1\ns_mov_b32 s34, {MEMS+6144}\ns_mov_b32 s35, {MEMS+6144+8192}')
    for i in range(8): A(f's_memtime s[36:37]\ns_waitcnt lgkmcnt(0)\nbuffer_store_dwordx4 v[0:3], v1, {s(WS,4)}, s{34+(i&1)} offen sc1\ns_waitcnt vmcnt(0)\ns_memtime s[38:39]\ns_waitcnt lgkmcnt(0)\ns_sub_u32 s36, s38, s36\ns_min_u32 s{32+(i&1)}, s{32+(i&1)}, s36')
    A(f's_cmp_gt_u32 s32, s33\ns_cselect_b32 s36, 3, 1\ns_lshr_b32 s37, s3, 1\ns_and_b32 s37, s37, 2\ns_xor_b32 s36, s36, s37')
    if 'par' in o: A(f's_xor_b32 s36, s36, {2*o["par"]}')
    A(f'v_mov_b32 v4, s36\nv_mov_b32 v5, s32\nv_mov_b32 v6, s33\nv_mov_b32 v7, s3\ns_mov_b64 exec, 1\nbuffer_store_dword{"x4 v[4:7]" if pr else " v4"}, off, {s(DB,4)}, 0 offset:136 sc1\ns_mov_b64 exec, -1\n{l}:\ns_barrier\n{l}_:')
    A(f'''s_and_b32 s{sQ}, s{sB}, 3
s_lshr_b32 s{sCG}, s{sB}, 2
s_lshr_b32 s{sM}, s{sCG}, 4''')
    srd(A,WA,7,5242880)
    for m in(1,2):
        l=A.lab(); A(f's_cmp_lg_u32 s{sM}, {m}\ns_cbranch_scc1 {l}\ns_mov_b32 s{WA}, s{ptr(7+m)}\ns_mov_b32 s{WA+1}, s{ptr(7+m)+1}\n{l}:')
    A(f'''v_and_b32 v2, 15, v0
v_lshrrev_b32 v3, 4, v0
v_mul_u32_u24 v{vX}, 1280, v2
v_lshl_add_u32 v{vX}, v3, 4, v{vX}
s_and_b32 s31, s{sW}, 1
s_lshr_b32 s48, s{sW}, 1
s_mul_i32 s{sXG}, s31, {16*1280}
s_mul_i32 s49, s48, 640
s_add_u32 s{sXG}, s{sXG}, s49
s_mul_i32 s49, s{sQ}, {32*1280}
s_add_u32 s{sXG}, s{sXG}, s49
s_mul_i32 s{sXL}, s31, 20480
s_mul_i32 s49, s48, 10240
s_add_u32 s{sXL}, s{sXL}, s49''')
    def xdma(i): dma(A,vX,XS,sXG,(i//10)*4*32*1280+(i%10)*64,sXL,(i//10)*40960+(i%10)*1024)
    for i in range(20): xdma(i)
    A(f'''v_lshrrev_b32 v{vS}, 3, v0
v_lshlrev_b32 v{vS}, 13, v{vS}
v_and_b32 v13, 7, v0
v_lshl_add_u32 v{vS}, v13, 4, v{vS}
s_and_b32 s{sG}, s{sCG}, 15
s_lshl_b32 s{sG}, s{sG}, 2
s_add_u32 s{sG}, s{sG}, s{sW}
s_lshl_b32 s{sOut}, s{sG}, 12
s_lshr_b32 s{sFl}, s{sG}, 1
s_lshl_b32 s{sFl}, s{sFl}, 5
s_lshl_b32 s{sG}, s{sG}, 7
s_mul_i32 s{sL}, s{sW}, 20480
s_add_u32 s{sL}, s{sL}, 81920
v_lshrrev_b32 v13, 2, v2
v_lshl_add_u32 v13, v3, 3, v13
v_and_b32 v14, 3, v0
v_lshlrev_b32 v14, 3, v14
v_add_u32 v14, s{sL}, v14
v_lshl_add_u32 v{vT}, v13, 7, v14
v_lshl_add_u32 v15, v13, 5, v14
s_lshl_b32 s49, s{sM}, 24
s_add_u32 s{sOut}, s{sOut}, s49
s_lshl_b32 s49, s{sQ}, 18
s_add_u32 s{sOut}, s{sOut}, s49
s_add_u32 s{sOut}, s{sOut}, {QX}
s_lshl_b32 s49, s{sM}, 3
s_add_u32 s{sFl}, s{sFl}, s49
s_and_b32 s49, s{sW}, 1
s_lshl_b32 s49, s49, 2
s_add_u32 s{sFl}, s{sFl}, s49
s_add_u32 s{sFl}, s{sFl}, s{sQ}
s_lshl_b32 s{sFl}, s{sFl}, 2''')
    lk,lv,lg,le=A.lab(),A.lab(),A.lab(),A.lab()
    SCA=0x3ea52b5c
    A(f'''v_mov_b32 v{vBias}, 0
s_mov_b32 s{sSc}, 1.0
s_mov_b32 s50, 0x7ff00000
s_cmp_ge_u32 s{sCG}, 44
s_cbranch_scc1 {lg}
s_cmp_ge_u32 s{sCG}, 42
s_cbranch_scc1 {lv}
s_cmp_ge_u32 s{sCG}, 40
s_cbranch_scc1 {lk}''')
    srd(A,WB,1,819200)
    A(f'''s_mov_b32 s{sRS}, 1280
s_lshl_b32 s51, s{sCG}, 5
s_mov_b32 s{sSc}, {SCA}
s_mov_b32 s{sES}, {16*1280}
s_add_u32 s{sEO}, s51, {AQ}
v_mul_u32_u24 v{vE}, 1280, v2
v_lshl_add_u32 v{vE}, v3, 3, v{vE}
s_mov_b32 s{sEN}, 0
s_branch {le}
{lk}:''')
    srd(A,WB,2,25600)
    A(f'''s_mov_b32 s{sRS}, 40
s_and_b32 s51, s{sCG}, 1
s_lshl_b32 s51, s51, 5
s_mov_b32 s{sES}, 640
s_add_u32 s{sEO}, s51, {AK}
v_mul_u32_u24 v{vE}, 40, v2
v_lshlrev_b32 v13, 3, v3
v_add_u32 v{vE}, v{vE}, v13
v_add_u32 v13, s51, v13
v_cmp_gt_u32 vcc, 40, v13
v_mov_b32 v13, s50
v_cndmask_b32 v{vE}, v13, v{vE}, vcc
s_mov_b32 s{sEN}, 0
s_branch {le}
{lv}:''')
    srd(A,WB,3,25600)
    A(f'''s_mov_b32 s{sRS}, 40
s_and_b32 s51, s{sCG}, 1
s_lshl_b32 s52, s51, 4
s_lshl_b32 s51, s51, 5
s_mov_b32 s{sES}, 32
s_mov_b32 s{sEO}, {AVT}
v_add_u32 v13, s52, v2
v_lshlrev_b32 v{vE}, 12, v13
v_lshl_add_u32 v{vE}, v3, 3, v{vE}
v_cmp_gt_u32 vcc, 20, v13
v_mov_b32 v13, s50
v_cndmask_b32 v{vE}, v13, v{vE}, vcc
s_mov_b32 s{sEN}, 1
s_branch {le}
{lg}:''')
    srd(A,WB,12,1280)
    A(f'''s_mov_b32 s{sRS}, 0
s_mov_b32 s51, 0
s_mov_b32 s{sES}, 32
s_cmp_eq_u32 s{sCG}, 44
s_mov_b32 s{sEO}, {AVT+20*4096}
s_cselect_b32 s{sEO}, {AVT+21*4096}, s{sEO}
s_cselect_b32 s{sSc}, 1.0, 0
s_cselect_b32 s52, 0, 1.0
v_mov_b32 v{vBias}, s52
s_cmp_le_u32 s{sCG}, 45
s_cselect_b32 s52, 1, 0
v_lshlrev_b32 v{vE}, 3, v3
v_cmp_gt_u32 vcc, s52, v2
v_mov_b32 v13, s50
v_cndmask_b32 v{vE}, v13, v{vE}, vcc
s_mov_b32 s{sEN}, 1
{le}:
v_lshrrev_b32 v13, 1, v0
v_mul_lo_u32 v13, v13, s{sRS}
v_and_b32 v14, 1, v0
v_lshl_add_u32 v13, v14, 4, v13
s_lshl_b32 s{sRS}, s{sRS}, 5''')
    def issue(c):
        for i in range(4):
            if c<20: dma(A,vS,WA,sG,(32*c+8*i)*8192,sL,(c%5)*4096+i*1024)
            else:
                dma(A,13,WB,51,0,sL,(c%5)*4096+i*1024); A(f's_add_u32 s51, s51, s{sRS}')
    for c in range(5): issue(c)
    for c in range(25):
        A(f's_waitcnt vmcnt({4*min(4,24-c)})')
        for n in range(4):
            for mm in range(2):
                if c<20: A(f'ds_read_b64_tr_b16 {W((n*20+c)*4+2*mm,2)}, v{vT} offset:{(c%5)*4096+mm*512+n*32}')
                else: A(f'ds_read_b64_tr_b16 {W(320+((c-20)*4+n)*4+2*mm,2)}, v15 offset:{(c%5)*4096+n*1024+mm*128}')
        A('s_waitcnt lgkmcnt(0)')
        if c+5<25: issue(c+5)
    l=A.lab()
    A(f's_cmp_lt_u32 s{sCG}, 44\ns_cbranch_scc1 {l}\nv_lshlrev_b32 v13, 4, v3')
    for k in range(20): A(f'buffer_load_dwordx4 {W(320+4*k,4)}, v13, {s(WB,4)}, 0 offen offset:{64*k}')
    A(f'{l}:')
    wait_dbg(A,128,4,vt=13)
    A(f'''v_mov_b32 v{vRA}, v1
v_add_u32 v{vRB}, 40960, v1
s_mul_i32 s49, s{sW}, 20480
v_add_u32 v{vRE}, s49, v1
s_lshr_b32 s49, s{sW}, 1
s_lshl_b32 s49, s49, 2
s_add_u32 s49, s49, s{sQ}
s_lshl_b32 s49, s49, 1
s_and_b32 s52, s{sW}, 1
s_add_u32 s49, s49, s52
s_mul_i32 s49, s49, s{sES}
s_add_u32 s{sEO}, s{sEO}, s49
s_lshl_b32 s{sES}, s{sES}, 4
s_mov_b32 s{sJ}, 0
s_mov_b32 s{sXB}, 81920
v_mov_b32 v{vF}, s{sQ}''')
    prof(A,1,pr)
    A(f's_cmp_eq_u32 s{sM}, 2\ns_cbranch_scc1 L_pN')
    for var in 'TN':
        A(f'L_p{var}:\ns_barrier')
        A(f's_add_u32 s{sXG}, s{sXG}, {8*32*1280}\ns_add_u32 s{sXL}, s{sXL}, s{sXB}')
        for sg in range(2):
            vr=(vRA,vRB)[sg]
            def rd(k):
                for tt in range(2): A(f'ds_read_b128 {v(XF+(k%3)*8+tt*4,4)}, v{vr} offset:{(tt*20+k)*1024}')
            rd(0); rd(1)
            for k in range(20):
                if k+2<20: rd(k+2)
                if sg==0: xdma(k)
                A(f's_waitcnt lgkmcnt({2*min(2,19-k)})')
                for n in range(4):
                    for tt in range(2):
                        d=v(ACC+(n*2+tt)*4,4); x=v(XF+(k%3)*8+tt*4,4); w=W((n*20+k)*4,4)
                        A(f'v_mfma_f32_16x16x32_bf16 {d}, {w if var=="T" else x}, {x if var=="T" else w}, {d if k else 0}')
            A(f's_waitcnt vmcnt({20 if sg==0 else 0})'); flag(A,vF,sFl)
            A(f'v_add_u32 v{vF}, 4, v{vF}')
            for wl in range(2):
                for t in range(2):
                    for h in range(2):
                        n,tt=(2*wl+h,t) if var=='T' else (2*wl+t,h)
                        b=ACC+(n*2+tt)*4; d=ST+(wl*2+t)*4+2*h
                        A(f'v_cvt_pk_bf16_f32 v{d}, v{b}, v{b+1}\nv_cvt_pk_bf16_f32 v{d+1}, v{b+2}, v{b+3}')
                    A(f'buffer_store_dwordx4 {v(ST+(wl*2+t)*4,4)}, v1, {s(WS,4)}, s{sOut} offen offset:{(wl*2+t)*1024} sc1')
            A(f's_add_u32 s{sOut}, s{sOut}, {4<<18}')
        ln,lx=A.lab(),A.lab()
        A(f's_cmp_lg_u32 s{sEN}, 0\ns_cbranch_scc1 {ln}')
        for ev in 'TN':
            def rd(k): A(f'ds_read_b128 {v(XF+(k%6)*4,4)}, v{vRE} offset:{k*1024}')
            for k in range(5): rd(k)
            for k in range(20):
                if k+5<20: rd(k+5)
                A(f's_waitcnt lgkmcnt({min(5,19-k)})')
                d=v(EA,4); x=v(XF+(k%6)*4,4); w=W(320+4*k,4)
                A(f'v_mfma_f32_16x16x32_bf16 {d}, {w if ev=="T" else x}, {x if ev=="T" else w}, {d if k else 0}')
            A(f's_branch {lx}\n{ln}:' if ev=='T' else f'{lx}:')
        for r in range(4): A(f'v_fma_f32 v{EA+4+r}, v{EA+r}, s{sSc}, v{vBias}')
        A(f'''v_cvt_pk_bf16_f32 v{EA+4}, v{EA+4}, v{EA+5}
v_cvt_pk_bf16_f32 v{EA+5}, v{EA+6}, v{EA+7}
buffer_store_dwordx2 {v(EA+4,2)}, v{vE}, {s(WS,4)}, s{sEO} offen sc1
s_add_u32 s{sEO}, s{sEO}, s{sES}
v_add_u32 v{vRA}, s{sXB}, v{vRA}
v_add_u32 v{vRB}, s{sXB}, v{vRB}
v_add_u32 v{vRE}, s{sXB}, v{vRE}
s_sub_u32 s{sXB}, 0, s{sXB}
s_add_u32 s{sJ}, s{sJ}, 1
s_cmp_lt_u32 s{sJ}, 8
s_cbranch_scc1 L_p{var}''')
        if var=='T': A('s_branch L_pE')
    A('L_pE:\ns_waitcnt vmcnt(0)'); flag(A,vF,sFl)
    A(f's_barrier\ns_lshl_b32 s31, s{sB}, 2\ns_add_u32 s31, s31, {APF}'); flag(A,vF,31)
    prof(A,2,pr)
```

```python
from common import *
def W(n,k): return a(n,k) if n<256 else v(96+n-256,k)
SH=147456
vL,vA,vU,vW4,vW1,vR4,vR1,vOW,vP,vPub,vWm,vFo,vFl,vD,vIx=0,1,2,4,5,6,7,8,9,10,11,12,13,14,15
SEL=16; ONE=20
sX,sH,sS,sRed,sML,sMR,sPb,sKV,sKM,sPS,sPR,sPD,sRF,sPF,sSc,sSl,sLim=3,36,37,38,39,40,41,42,43,44,45,46,47,48,49,50,51
sPS2=29; sPar=52; sM=54
SM='v_smfmac_f32_16x16x64_bf16'; M32='v_mfma_f32_16x16x32_bf16'; M16='v_mfma_f32_16x16x16_bf16'
slot=lambda c:(c%9)*4096
def roleR(A,o):
    pr=o.get('prof')
    A(f'''L_rec:
s_lshl_b32 s97, s{sX}, 5
s_add_u32 s97, s97, s{sH}
s_add_u32 s97, s97, 192
s_lshl_b32 s97, s97, 2
s_add_u32 s97, s97, s{sW}
s_lshl_b32 s97, s97, 8
s_add_u32 s97, s97, {PROF}''')
    prof(A,0,pr)
    A(f'''v_mov_b32 v24, v0
v_and_b32 v25, 15, v0
v_lshrrev_b32 v26, 4, v0
v_lshrrev_b32 v27, 2, v0
v_lshlrev_b32 v27, 13, v27
v_and_b32 v31, 3, v0
v_lshl_add_u32 v27, v31, 4, v27
s_mul_i32 s33, s{sW}, 36864
s_lshl_b32 s34, s{sH}, 8
s_lshl_b32 s31, s{sW}, 6
s_add_u32 s34, s34, s31
s_mul_i32 s31, s{sX}, {320*8192}
s_sub_u32 s35, {320*8192}, s31
s_add_u32 s35, s35, s34
s_add_u32 s34, s34, s31
s_mul_i32 s62, s{sH}, 163840
s_mul_i32 s31, s{sX}, 640
s_add_u32 s62, s62, s31
s_mul_i32 s31, s{sW}, 160
s_add_u32 s62, s62, s31''')
    srd(A,WA,7,5242880); srd(A,WB,10,5242880)
    def issue(c):
        if c in(10,20): A(f's_mov_b32 s{WA}, s{ptr(10-c//10)}\ns_mov_b32 s{WA+1}, s{ptr(10-c//10)+1}')
        for i in range(4):
            if c==25 or c>30: dma(A,28,WB,62,32*i*1280+32*(0 if c==25 else c-30),33,slot(c)+i*1024)
            else:
                loc=(c%10<5) if c<20 else c>25
                kk=c%5 if c<25 else c-26
                dma(A,27,WA,34 if loc else 35,(64*kk+16*i)*8192,33,slot(c)+i*1024)
    for c in range(9): issue(c)
    A(f'''v_lshrrev_b32 v28, 1, v0
v_mul_u32_u24 v28, 1280, v28
v_and_b32 v32, 1, v0
v_lshl_add_u32 v28, v32, 4, v28
v_lshlrev_b32 v31, 3, v31
v_add_u32 v31, s33, v31
v_bfe_u32 v33, v0, 2, 1
v_bfe_u32 v34, v0, 3, 1
v_bfe_u32 v35, v0, 4, 1
v_bfe_u32 v36, v0, 5, 1
v_lshl_add_u32 v29, v34, 3, v33
v_lshl_add_u32 v29, v35, 2, v29
v_lshl_add_u32 v29, v36, 4, v29
v_lshl_add_u32 v29, v29, 6, v31
v_lshl_add_u32 v30, v34, 4, v33
v_lshl_add_u32 v30, v35, 5, v30
v_lshl_add_u32 v30, v36, 2, v30
v_lshl_add_u32 v30, v30, 5, v31
v_add_u32 v{vR4}, {SH}, v1
v_add_u32 v{vL}, s33, v1
v_lshrrev_b32 v37, 1, v25
v_lshlrev_b32 v{vA}, 8, v26
v_lshl_add_u32 v{vA}, v32, 7, v{vA}
v_lshl_add_u32 v{vA}, v37, 4, v{vA}
v_add_u32 v{vA}, {SH}, v{vA}
s_lshl_b32 s31, s{sW}, 10
v_add_u32 v{vW4}, s31, v{vR4}
v_lshlrev_b32 v{vR1}, 2, v24
v_add_u32 v{vR1}, {SH+4096}, v{vR1}
s_lshl_b32 s31, s{sW}, 8
v_add_u32 v{vW1}, s31, v{vR1}
s_lshr_b32 s31, s{sW}, 1
s_lshl_b32 s31, s31, 10
s_and_b32 s63, s{sW}, 1
s_lshl_b32 s32, s63, 3
s_add_u32 s31, s31, s32
s_add_u32 s31, s31, 10240
v_add_u32 v{vOW}, s31, v{vR4}
v_and_b32 v38, 7, v24
v_lshlrev_b32 v{vPub}, 2, v38
v_lshl_add_u32 v{vPub}, v26, 5, v{vPub}
s_mov_b32 s100, 0xf0f0f0f0
s_mov_b32 s101, 0xf0f0f0f0
v_lshl_add_u32 v{vP}, v34, 12, v{vPub}
v_lshrrev_b32 v64, 1, v38
v_lshl_add_u32 v64, v64, 1, v35
v_lshlrev_b32 v65, 3, v32
v_lshl_add_u32 v{vPub}, v64, 4, v65
v_mul_u32_u24 v64, 1280, v64
v_add_u32 v64, v64, v65
v_or_b32 v65, v34, v36
v_cmp_eq_u32 vcc, 0, v65
v_mov_b32 v65, 0x7ff00000
v_cndmask_b32 v{vPub}, v65, v{vPub}, vcc
v_lshlrev_b32 v{vWm}, 7, v24
v_add_u32 v{vWm}, {SH-4096}, v{vWm}
v_lshl_add_u32 v{vFo}, v25, 2, 32
s_mov_b32 s{sPar}, 0xaaaaaaaa
s_mov_b32 s{sPar+1}, 0xaaaaaaaa
v_mov_b32 v39, 0x4444
v_mov_b32 v40, 0xeeee
v_cndmask_b32 v{vIx}, v39, v40, {s(sPar,2)}
v_mov_b32 v39, 0x3f80
v_mov_b32 v40, 1.0
v_and_b32 v41, 2, v24
v_cmp_eq_u32 vcc, 0, v41
v_cndmask_b32 v39, v40, v39, vcc
v_lshrrev_b32 v41, 2, v25
v_cmp_eq_u32 vcc, v41, v26
v_cndmask_b32 v{SEL}, 0, v39, vcc
v_mov_b32 v{SEL+1}, 0
v_mov_b32 v{SEL+2}, 0
v_mov_b32 v{SEL+3}, v{SEL}
s_mov_b32 s{sSc}, 0x3e0293ee
s_mov_b32 s{sLim}, 0x42800000
s_mov_b32 s{sSl}, -1
s_mov_b32 s{sS}, 0''')
    for i in range(4):
        A(f'v_mov_b32 v{ONE+i}, 0x3f803f80\ns_mov_b32 s{sM+2*i}, {0x11111111<<i}\ns_mov_b32 s{sM+2*i+1}, {0x11111111<<i}\nv_mov_b32 v{44+i}, -1')
    A(f'''s_add_u32 s31, s{sH}, 32
s_cmp_eq_u32 s{sW}, 1
s_cselect_b32 s31, s31, 99
s_cmp_eq_u32 s{sW}, 0
s_cselect_b32 s{sRed}, s{sH}, s31
s_mul_i32 s31, s{sX}, {64*5120}
s_add_u32 s{sML}, s31, {MEMP-SH}
s_lshl_b32 s32, s{sRed}, 7
s_add_u32 s{sPb}, s31, s32
s_add_u32 s{sPb}, s{sPb}, {MEMP}
s_lshl_b32 s{sMR}, s{sX}, 14
s_add_u32 s{sPS2}, s{sMR}, s32
s_add_u32 s{sPS2}, s{sPS2}, {MEMS}
s_sub_u32 s{sMR}, {MEMS+16384-SH}, s{sMR}
s_add_u32 s31, s31, {PART}
s_lshl_b32 s32, s{sRed}, 12
s_add_u32 s{sPR}, s31, s32
s_sub_u32 s{sPR}, s{sPR}, {SH}
s_mul_i32 s32, s{sW}, 40960
s_add_u32 s{sPS}, s31, s32
s_lshl_b32 s32, s{sH}, 7
s_add_u32 s{sPS}, s{sPS}, s32
s_mov_b32 s{sPD}, 163840
s_mov_b32 s{sPF}, s32
s_lshl_b32 s31, s{sX}, 2
s_add_u32 s31, s31, s{sW}
s_lshl_b32 s31, s31, 2
s_add_u32 s{sRF}, s32, s31
s_add_u32 s{sRF}, s{sRF}, {RF}
s_lshl_b32 s31, s{sH}, 2
s_add_u32 s31, s31, s{sW}
s_lshl_b32 s{sKV}, s31, 11
s_add_u32 s{sKV}, s{sKV}, {KX-SH}
s_mul_i32 s31, s{sX}, {VM-KM}
s_lshl_b32 s32, s{sH}, 11
s_add_u32 s32, s32, {KM-SH-10240-(1<<16)}
s_add_u32 s{sKM}, s31, s32
s_cmp_eq_u32 s{sX}, 0
s_cselect_b64 s[26:27], 0, -1''')
    wait_dbg(A,0,256,vt=42,st=31,mask=1023)
    A(f'''s_bfe_u32 s32, s31, 0xa000a
s_bfe_u32 s31, s31, 0xa0014
s_min_u32 s63, s31, s32''')
    l=A.lab(); l2=A.lab()
    A(f'''s_cmp_ge_u32 s{sRed}, 40
s_cbranch_scc1 {l}
v_lshrrev_b32 v42, 3, v24
v_lshlrev_b32 v43, 15, v42
v_lshl_add_u32 v43, v38, 4, v43
v_mul_u32_u24 v42, 5120, v42
v_lshl_add_u32 v42, v38, 4, v42''')
    for i in range(8):
        A(f's_add_u32 s31, s{sPb}, {i*40960}\nbuffer_store_dwordx4 v[44:47], v42, {s(WS,4)}, s31 offen')
        for pa in range(2): A(f's_add_u32 s31, s{sPS2}, {(i<<18)+pa*8192}\nbuffer_store_dwordx4 v[44:47], v43, {s(WS,4)}, s31 offen sc1')
    A(f's_add_u32 s31, s{sPR}, {163840}\ns_cmp_ge_u32 s63, 32\ns_cbranch_scc1 {l2}')
    for sc in(' sc1',''):
        for i in range(8): A(f'buffer_store_dwordx4 v[44:47], v{vR4}, {s(WS,4)}, s{31 if i&4 else sPR} offen offset:{1024*(i&3)}{sc}')
        A(f's_branch {l}\n{l2}:' if sc else f'{l}:')
    for c in range(35):
        A(f's_waitcnt vmcnt({4*min(8,34-c)})')
        if c==10:
            l=A.lab(); A(f's_cmp_ge_u32 s{sRed}, 40\ns_cbranch_scc1 {l}\nv_mov_b32 v42, 1\ns_mov_b64 exec, 1\nbuffer_atomic_add v42, off, {s(DB,4)}, 0 offset:132 sc1\ns_mov_b64 exec, -1\n{l}:')
        for j in range(2):
            for hh in range(2):
                for mm in range(2):
                    r=8*j+4*hh+2*mm; d=W(16*c+r,2) if c<26 else v(48+r,2)
                    if c==25 or c>30: A(f'ds_read_b64_tr_b16 {d}, v30 offset:{slot(c)+(64*j+8*hh+2*mm)*32}')
                    else: A(f'ds_read_b64_tr_b16 {d}, v29 offset:{slot(c)+(32*hh+2*mm)*64+32*j}')
        A('s_waitcnt lgkmcnt(0)')
        if c+9<35: issue(c+9)
        if c>=26:
            for i in range(4): A(f'ds_write_b128 v{vL}, {v(48+4*i,4)} offset:{slot(c)+1024*i}')
            A('s_waitcnt lgkmcnt(0)')
    prof(A,1,pr)
    wait_dbg(A,132,80,vt=42)
    wait_dbg(A,136,1,vt=42)
    l=A.lab(); srd(A,WA,6,10240)
    A(f'''s_and_b32 s31, s31, 2
s_lshl_b32 s31, s31, 12
s_add_u32 s{sPS2}, s{sPS2}, s31
s_add_u32 s{sMR}, s{sMR}, s31
s_lshl_b32 s32, s{sX}, 14
s_add_u32 s31, s31, s32
s_add_u32 s31, s31, {MEMS-SH}
s_cmp_ge_u32 s63, 32
s_cselect_b32 s{sML}, s{sML}, s31
s_cmp_ge_u32 s{sRed}, 40
s_cbranch_scc1 {l}
buffer_load_dword v43, v{vPub}, {s(WS,4)}, s{sPb} offen
s_mul_i32 s31, s{sX}, 640
s_lshl_b32 s32, s{sRed}, 4
s_add_u32 s31, s31, s32
buffer_load_dwordx2 v[42:43], v64, {s(WA,4)}, s31 offen
s_waitcnt vmcnt(0)
buffer_store_dwordx2 v[42:43], v{vPub}, {s(WS,4)}, s{sPS2} offen sc1
buffer_store_dwordx2 v[42:43], v{vPub}, {s(WS,4)}, s{sPb} offen
{l}:''')
    wait_dbg(A,128,4,vt=44)
    wait_flags(A,vFo,s(sPF),'0',vFl)
    prof(A,2,pr)
    A(f's_mov_b32 s96, s{sSpin}')
    for d,c,j in((60,26,0),(68,26,1),(80,27,0),(88,27,1)):
        for hh in range(2): A(f'ds_read_b128 {v(d+4*hh,4)}, v{vL} offset:{slot(c)+2048*j+1024*hh}')
    A('s_cmp_lt_u32 s63, 32\ns_cbranch_scc1 L_rS')
    for md in 'FS': loop(A,o,md)
    A(f'L_rX:\nbuffer_store_dwordx2 v[2:3], v{vOW}, {s(WS,4)}, s{sKM} offen sc1\ns_waitcnt vmcnt(0)\ns_barrier\nv_mov_b32 v24, 64'); flag(A,24,sRF)
    prof(A,3,pr)
    if pr: A(f's_sub_u32 s31, s96, s{sSpin}\nv_mov_b32 v3, s31\ns_mov_b64 exec, 1\nbuffer_store_dword v3, off, {s(WS,4)}, s97 offset:64')
    A('s_endpgm')
def loop(A,o,md):
    sc=' sc1' if md=='S' else ''; ws=s(WS,4); RP=o.get('rp',2); LP=o.get('lp',0) if md=='F' else 0; pr=o.get('prof')
    l1=' nt' if md=='F' and o.get('nt',0)&1 else ' sc1'; l2=' nt' if md=='F' and o.get('nt',0)&2 else ' sc1'
    def tp(k):
        if o.get('tp') and md=='F': A(f's_memtime s[{64+2*k}:{65+2*k}]')
    def tile(d,c,j):
        for hh in range(2): A(f'ds_read_b128 {v(d+4*hh,4)}, v{vL} offset:{slot(c)+2048*j+1024*hh}')
    sm=lambda d,x,w: A(f'{SM} {v(d,4)}, {v(x,4)}, {w}, v{vIx}')
    BB=[60,68,80,88]
    def poll(so): A(f'buffer_load_dwordx4 v[76:79], v{vW4}, {ws}, s{so} offen sc1\nbuffer_load_dword v{vD}, v{vW1}, {ws}, s{so} offen sc1')
    def pwait(so,off,tmp,n):
        t,e=A.lab(),A.lab()
        A(f'''s_waitcnt vmcnt({n})
{t}:
ds_write_b128 v{vW4}, v[76:79] offset:{off}
ds_write_b32 v{vW1}, v{vD} offset:{off}
v_max3_u32 v{tmp}, v76, v77, v{vD}
v_max3_u32 v{tmp}, v78, v79, v{tmp}
v_cmp_eq_u32 vcc, -1, v{tmp}
s_cbranch_vccz {e}'''); poll(so); A('s_waitcnt vmcnt(0)'); spin(A,t)
        A(f'{e}:\ns_waitcnt lgkmcnt(0)')
    def rpoll(): poll(sMR)
    A(f'L_r{md}:\ns_barrier')
    if o.get('dl'): A(f's_sleep {o["dl"]}')
    poll(sML); A(f's_waitcnt vmcnt({4 if md=="F" else 3})')
    for i in range(12): A(f'v_mov_b64 {v(24+2*i,2)}, 0')
    pwait(sML,0,48,0)
    if RP<0: rpoll()
    A('s_barrier')
    if o.get('tp'): A('s_mov_b32 s78, s64\ns_mov_b32 s66, s76')
    tp(0)
    rdA=lambda d,k: A(f'ds_read_b128 {v(d,4)}, v{vA} offset:{1024*k}')
    for k in range(3): rdA(48+4*k,k)
    q=['A0','A1','A2']
    def wait(x):
        if x in q:
            i=len(q)-1-q[::-1].index(x); n=len(q)-1-i; del q[:i+1]; A(f's_waitcnt lgkmcnt({n})')
    cvt=lambda d,x,y: A(f'v_cvt_pk_bf16_f32 v{d}, v{x}, v{y}')
    add=lambda d,x,y: A(f'v_add_f32 v{d}, v{x}, v{y}')
    pk=lambda d,x,y: A(f'v_pk_add_f32 {v(d,2)}, {v(x,2)}, {v(y,2)}')
    def nx(L,n=1):
        for _ in range(n): L.pop(0)()
    for k in range(5):
        x=48+4*(k%3)
        if k==RP: rpoll()
        wait(f'A{k}')
        for j in range(2):
            i=2*k+j
            wait(f'B{i}'); sm(32+4*j,x,v(BB[i%4],8))
            if i+4<10: tile(BB[i%4],26+(i+4)//2,i%2); q+=[f'B{i+4}']*2
            if i>=8: A(f'buffer_load_dwordx4 {v(88+4*j,4)}, v{vR4}, {ws}, s{sKV} offen offset:{1024*j}')
            sm(24+4*j,x,W(16*k+8*j,8))
            if k<2: sm(40+4*j,x,W(16*(10+k)+8*j,8))
        if k+3<5: rdA(x,k+3); q.append(f'A{k+3}')
    pwait(sMR,5120,84,2); A('s_barrier'); tp(2)
    for k in range(5): rdA(60+4*k,5+k)
    vl=[lambda k=k,j=j: sm(40+4*j,48+4*(k%3),W(16*(10+k)+8*j,8)) for k in(2,3,4) for j in range(2)]
    qs=[lambda k=k,j=j: (A(f's_waitcnt lgkmcnt({4-k})') if j==0 else 0,sm(24+4*j,60+4*k,W(16*(5+k)+8*j,8))) for k in range(5) for j in range(2)]
    ks=[lambda k=k,j=j: sm(32+4*j,60+4*k,W(16*(20+k)+8*j,8)) for k in range(5) for j in range(2)]
    vs=[lambda k=k,j=j: sm(40+4*j,60+4*k,W(16*(15+k)+8*j,8)) for k in range(5) for j in range(2)]
    A(f's_add_u32 s31, s{sKV}, {VX-KX}'); nx(vl)
    for t_ in range(2): A(f'buffer_load_dwordx4 {v(80+4*t_,4)}, v{vR4}, {ws}, s31 offen offset:{1024*t_}'); nx(vl)
    A(f'buffer_store_dwordx2 v[2:3], v{vOW}, {ws}, s{sKM} offen sc1'); nx(vl)
    A(f's_add_u32 s{sKM}, s{sKM}, {1<<16}\ns_add_u32 s{sKV}, s{sKV}, {1<<18}'); nx(vl)
    A(f's_add_u32 s{sMR}, s{sMR}, 32768\ns_add_u32 s{sPS2}, s{sPS2}, 32768'); nx(vl)
    A(f's_add_u32 s{sPb}, s{sPb}, 5120\ns_add_u32 s{sML}, s{sML}, {5120 if md=="F" else 32768}')
    l2,l3,ln,le=A.lab(),A.lab(),A.lab(),A.lab()
    def qrun(ch):
        L=list(qs)
        for i in range(10):
            L[i]()
            if i<len(ch): A(ch[i])
    A(f's_cmp_ge_u32 s{sRed}, 40\ns_cbranch_scc1 {l2}')
    qrun([f's_add_u32 s31, s{sPR}, s{sPD}\nv_mov_b64 v[56:57], -1','v_mov_b64 v[58:59], -1',f'buffer_load_dword v{vD}, v{vPub}, {ws}, s{sPb} offen']+[x for i in range(4) for x in(f'buffer_store_dwordx4 v[56:59], v{vR4}, {ws}, s31 offen offset:{1024*i}{sc}','')])
    A(f's_waitcnt vmcnt(6)\ns_branch {le}\n{l2}:\ns_cmp_eq_u32 s{sW}, 2\ns_cbranch_scc0 {l3}')
    qrun([f's_add_u32 s32, s{sS}, 1\ns_min_u32 s32, s32, 63',f'v_cmp_ge_u32 vcc, s32, v{vFl}\ns_add_u32 s31, s{sKV}, {VX-KX}',f's_cbranch_vccnz L_rP{md}\nL_rPb{md}:',f'buffer_load_dword v{vD}, v{vWm}, {ws}, s{sKV} offen','',f'buffer_load_dword v{vD}, v{vWm}, {ws}, s31 offen','',f'buffer_load_dword v{vFl}, v{vFo}, {ws}, s{sPF} offen sc1'])
    A(f's_waitcnt vmcnt(4)\ns_branch {le}\n{l3}:\ns_cmp_eq_u32 s{sW}, 3\ns_cbranch_scc0 {ln}\ns_max_u32 s31, s{sS}, 1\ns_sub_u32 s31, s31, 1\nv_mov_b32 v56, s31')
    flag(A,56,sRF); qrun([]); A(f's_waitcnt vmcnt(2)\ns_branch {le}\n{ln}:'); qrun([]); A(f's_waitcnt vmcnt(1)\n{le}:')
    nx(ks,2)
    add(24,24,25); add(25,26,27); nx(ks); add(26,28,29); add(27,30,31); nx(ks)
    A(f'v_mul_f32 v24, s{sSc}, v24\nv_mul_f32 v25, s{sSc}, v25'); nx(ks)
    A(f'v_mul_f32 v26, s{sSc}, v26\nv_mul_f32 v27, s{sSc}, v27'); nx(ks)
    cvt(48,24,25); cvt(49,26,27); nx(ks)
    A(f'{M16} v[24:27], v[48:49], {v(SEL,2)}, 0\n{M16} v[28:31], v[48:49], {v(SEL+2,2)}, 0')
    nx(ks,2); cvt(52,24,25); cvt(53,26,27); nx(ks); cvt(54,28,29); cvt(55,30,31)
    A(f'{M32} v[24:27], v[88:91], v[52:55], 0')
    add(32,32,33); add(33,34,35); cvt(50,32,33)
    add(34,36,37); add(35,38,39); cvt(51,34,35)
    A(f'{M32} v[28:31], v[92:95], v[52:55], 0')
    A(f'{M16} v[32:35], v[50:51], {v(SEL,2)}, 0\n{M16} v[36:39], v[50:51], {v(SEL+2,2)}, 0')
    nx(vs); A('v_mov_b64 v[2:3], v[50:51]'); tile(88,31,0)
    cvt(56,32,33); cvt(57,34,35); cvt(58,36,37); cvt(59,38,39)
    for i in range(2): A(f'v_cndmask_b32 v{24+i}, v{24+i}, v{28+i}, {s(sPar,2)}')
    A(f'{M32} v[32:35], v[56:59], v[52:55], 0')
    for i in range(2,4): A(f'v_cndmask_b32 v{24+i}, v{24+i}, v{28+i}, {s(sPar,2)}')
    A(f'ds_write_b128 v{vW4}, v[24:27]')
    nx(vs)
    A(f'v_cndmask_b32 v48, v32, v34, {s(sPar,2)}\nds_write_b32 v{vW1}, v48')
    nx(vs,2)
    A('s_waitcnt lgkmcnt(0)\ns_barrier'); tp(3)
    for i in range(4): A(f'ds_read_b128 {v(24+4*i,4)}, v{vR4} offset:{1024*i}')
    A(f'ds_read2st64_b32 v[48:49], v{vR1} offset0:0 offset1:1\nds_read2st64_b32 v[50:51], v{vR1} offset0:2 offset1:3')
    nx(vs,6)
    A('s_waitcnt lgkmcnt(4)'); pk(24,24,28); pk(26,26,30)
    A('s_waitcnt lgkmcnt(2)'); pk(32,32,36); pk(34,34,38); pk(52,24,32); pk(54,26,34)
    A('s_waitcnt lgkmcnt(0)'); pk(48,48,50); add(56,48,49)
    dpp=lambda d,x,p: A(f'v_mov_b32_dpp v{d}, v{x} quad_perm:[{p},{p},{p+2},{p+2}] row_mask:0xf bank_mask:0xf')
    def soft(first):
        for i in range(4): A(f'v_exp_f32 v{32+i}, v{52+i}')
        A('v_exp_f32 v36, v56'); cvt(32,32,33); cvt(33,34,35)
        if first: tile(72,31,1)
        dpp(24,32,0); dpp(25,33,0); dpp(26,32,1); dpp(27,33,1); dpp(37,36,0); dpp(38,36,1)
        A(f'{M32} v[32:35], {v(ONE,4)}, v[24:27], 0'); cvt(28,37,38); cvt(31,37,38)
        if first: A('v_mov_b32 v29, 0')
        A(f'{M32} v[36:39], v[80:83], v[24:27], 0')
    soft(1)
    add(58,40,41); add(57,42,43); add(59,44,45); add(44,46,47)
    A(f'{M32} v[40:43], v[84:87], v[24:27], 0'); cvt(58,58,57); cvt(59,59,44)
    A(f'''v_max3_f32 v57, |v52|, |v53|, |v54|
{M16} v[32:35], {v(ONE,2)}, v[28:29], v[32:35]
v_max3_f32 v57, |v55|, |v56|, v57
v_mov_b32 v30, 0
{M16} v[36:39], v[58:59], v[28:29], v[36:39]
v_cmp_nge_f32 vcc, s{sLim}, v57
{M16} v[40:43], v[58:59], v[30:31], v[40:43]
s_cbranch_vccnz L_rM{md}
L_rMb{md}:
v_cndmask_b32 v2, v2, v58, s[26:27]
v_cndmask_b32 v3, v3, v59, s[26:27]
v_rcp_f32 v32, v32
s_cmp_eq_u32 s{sS}, 63
s_cbranch_scc1 L_rX''')
    tile(64,32,0)
    for i in range(4): A(f'v_cndmask_b32 v{40+i}, v{36+i}, v{40+i}, {s(sPar,2)}')
    A('v_pk_mul_f32 v[40:41], v[40:41], v[32:33] op_sel_hi:[1,0]\nv_pk_mul_f32 v[42:43], v[42:43], v[32:33] op_sel_hi:[1,0]')
    cvt(40,40,41); cvt(41,42,43)
    A(f'ds_write_b64 v{vOW}, v[40:41]'); tile(48,32,1); tile(80,33,0)
    for b in(44,46,60,62): A(f'v_mov_b64 {v(b,2)}, 0')
    A('s_waitcnt lgkmcnt(4)\ns_barrier'); tp(4)
    A(f'ds_read_b128 v[32:35], v{vR4} offset:10240\nds_read_b128 v[36:39], v{vR4} offset:11264')
    for b in(24,26,28,30,56,58): A(f'v_mov_b64 {v(b,2)}, 0')
    for n in range(1,5): A(f's_add_u32 s{31+n}, s{sPS}, {8192*n}')
    acc={1:44,2:60,0:24,3:28,4:56}
    def post(n,f=None):
        b=acc[n]; add(b,b,b+1); add(b+1,b+2,b+3)
        if f: f()
        cvt(b,b,b+1)
        A(f'buffer_store_dword v{b}, v{vP}, {ws}, s{31+n if n else sPS} offen{sc}')
    A('s_waitcnt lgkmcnt(1)'); sm(44,32,v(88,8)); tile(88,33,1)
    A('s_waitcnt lgkmcnt(2)'); sm(44,36,v(72,8)); tile(72,34,0)
    sm(60,32,v(64,8)); tile(64,34,1); sm(60,36,v(48,8))
    sm(24,32,W(400,8)); post(1,lambda:sm(24,36,W(408,8)))
    sm(28,32,v(80,8)); A('s_waitcnt lgkmcnt(4)'); post(2,lambda:sm(28,36,v(88,8)))
    A('s_waitcnt lgkmcnt(2)'); sm(56,32,v(72,8)); A('s_waitcnt lgkmcnt(0)'); post(0,lambda:sm(56,36,v(64,8)))
    post(3); post(4); tp(5)
    t,e,x=A.lab(),A.lab(),A.lab()
    def rset(b):
        for i in range(4): A(f'buffer_load_dwordx4 {v(b+4*i,4)}, v{vR4}, {ws}, s{sPR} offen offset:{1024*i} sc1')
    def rchk(b0):
        for i in range(4):
            b=b0+4*i
            A(f's_waitcnt vmcnt({7-i})\n{M32} v[56:59], v[76:79], {v(b,4)}, {"v[56:59]" if i else 0}\nv_max3_u32 v{vD}, v{b}, v{b+1}, {"0" if i==0 else v(vD)}\nv_max3_u32 v{vD}, v{b+2}, v{b+3}, v{vD}')
        A(f'v_cmp_eq_u32 vcc, -1, v{vD}\ns_cbranch_vccz {e}')
    tile(60,26,0); tile(68,26,1); tile(80,27,0); tile(88,27,1)
    A(f's_add_u32 s{sPS}, s{sPS}, s{sPD}\ns_add_u32 s{sS}, s{sS}, 1\ns_cmp_ge_u32 s{sRed}, 40\ns_cbranch_scc1 {x}')
    if o.get('da'): A(f's_sleep {o["da"]}')
    rset(24)
    A(f'v_mov_b32 v79, 0x3f80\nv_cndmask_b32 v79, v79, 1.0, s[100:101]')
    for i in range(4): A(f'v_cndmask_b32 v{76+i}, 0, v79, {s(sM+2*i,2)}')
    if o.get('db',1): A(f's_sleep {o.get("db",1)}')
    A(f'{t}:'); rset(40); rchk(24); rset(24); rchk(40); spin(A,t)
    A(f'{e}:')
    for i in range(4): A(f'v_add_f32_dpp v{56+i}, v{56+i}, v{56+i} row_ror:8 row_mask:0xf bank_mask:0xf')
    cvt(56,56,57); cvt(57,58,59)
    A(f'buffer_store_dwordx2 v[56:57], v{vPub}, {ws}, s{sPS2} offen sc1')
    if md=='F': A(f'buffer_store_dwordx2 v[56:57], v{vPub}, {ws}, s{sPb} offen')
    tp(6)
    A(f's_add_u32 s{sPR}, s{sPR}, s{sPD}\n{x}:\ns_sub_u32 s{sPD}, 0, s{sPD}')
    if o.get('tp') and md=='F':
        l=A.lab(); A(f's_cmp_lg_u32 s{sS}, {o["tp"]}\ns_cbranch_scc1 {l}\ns_waitcnt lgkmcnt(0)\ns_mov_b64 exec, 1')
        for k in range(8): A(f'v_mov_b32 v58, s{64+2*k}\nbuffer_store_dword v58, off, {ws}, s97 offset:{32+4*k}')
        A(f's_mov_b64 exec, -1\ns_waitcnt vmcnt(0)\n{l}:')
    A(f's_branch L_r{md}')
    A(f'L_rP{md}:'); wait_flags(A,vFo,s(sPF),'s32',vFl); A(f's_branch L_rPb{md}')
    A(f'''L_rM{md}:
v_max3_f32 v57, v52, v53, v54
v_max3_f32 v57, v55, v56, v57
v_mov_b32_dpp v44, v57 quad_perm:[1,0,3,2] row_mask:0xf bank_mask:0xf
v_max_f32 v57, v57, v44
v_mov_b32 v44, v57
v_permlane16_swap_b32 v44, v57
v_max_f32 v57, v57, v44
v_mov_b32 v44, v57
v_permlane32_swap_b32 v44, v57
v_max_f32 v57, v57, v44''')
    for i in range(5): A(f'v_sub_f32 v{52+i}, v{52+i}, v57')
    soft(0)
    A(f'''{M32} v[40:43], v[84:87], v[24:27], 0
{M16} v[32:35], {v(ONE,2)}, v[28:29], v[32:35]
{M16} v[36:39], v[58:59], v[28:29], v[36:39]
{M16} v[40:43], v[58:59], v[30:31], v[40:43]
s_branch L_rMb{md}''')
```

```python
from common import *
def roleT(A,o):
    pr=o.get('prof'); ws=s(WS,4)
    A(f's_cmp_ge_u32 s{sB}, 32\ns_cbranch_scc1 L_t2')
    Q,K,V,KMr,VMr,S,O,P,G=16,48,80,112,128,136,160,224,240
    vRF,vG,vOB=4,5,6
    sS,sQ,sKM,sVM,sG,sOB,sRFo,sTF,sSc=32,33,34,35,36,37,38,39,40
    A(f'''v_and_b32 v2, 15, v0
v_lshrrev_b32 v3, 4, v0
v_and_b32 v{vRF}, 1, v0
v_lshl_add_u32 v{vRF}, v{vRF}, 4, 12
v_mov_b32 v7, 0x3f80
v_and_b32 v8, 2, v0
v_cmp_eq_u32 vcc, 0, v8
v_cndmask_b32 v7, 1.0, v7, vcc
v_lshrrev_b32 v8, 2, v2
v_cmp_eq_u32 vcc, v8, v3
v_cndmask_b32 v244, 0, v7, vcc
v_mov_b32 v245, 0
v_mov_b32 v246, 0
v_mov_b32 v247, v244
v_lshlrev_b32 v{vG}, 1, v2
v_lshrrev_b32 v7, 2, v2
v_lshlrev_b32 v{vOB}, 15, v7
v_lshl_add_u32 v{vOB}, v3, 6, v{vOB}
v_and_b32 v7, 3, v0
v_lshl_add_u32 v{vOB}, v7, 4, v{vOB}
v_lshlrev_b32 v3, 2, v3
v_mov_b32 v8, 0xff7fffff
v_mov_b32 v{P+2}, 0
v_mov_b32 v{P+3}, 0
s_mov_b32 s{sS}, s{sW}
s_lshl_b32 s31, s{sW}, 5
s_add_u32 s31, s31, s{sB}
s_lshl_b32 s{sQ}, s31, 13
s_add_u32 s{sQ}, s{sQ}, {QX}
s_lshl_b32 s{sKM}, s31, 11
s_add_u32 s{sKM}, s{sKM}, {KM}
s_lshl_b32 s{sVM}, s31, 11
s_add_u32 s{sVM}, s{sVM}, {VM}
s_lshl_b32 s{sTF}, s31, 2
s_add_u32 s{sTF}, s{sTF}, {T1F}
s_lshl_b32 s{sG}, s{sW}, 6
s_add_u32 s{sG}, s{sG}, {AVT+21*4096}
s_lshl_b32 s{sOB}, s{sW}, 18
s_lshl_b32 s31, s{sB}, 10
s_add_u32 s{sOB}, s{sOB}, s31
s_add_u32 s{sOB}, s{sOB}, {OB}
s_lshl_b32 s{sRFo}, s{sB}, 7
s_add_u32 s{sRFo}, s{sRFo}, {RF}
s_mov_b32 s{sSc}, 0x3e0293ee''')
    for r in range(4): A(f'v_add_u32 v7, {r}, v3\nv_cmp_le_u32 s[{42+2*r}:{43+2*r}], v7, v2')
    for t in range(2): A(f'v_mov_b32 v{P+8+4*t+1}, 0\nv_mov_b32 v{P+8+4*t+2}, 0')
    A('L_t1:')
    for m,R in((0,Q),(1,K),(2,V)):
        for h in range(2):
            A(f's_add_u32 s31, s{sQ}, {(m<<24)+4096*h}')
            for i in range(4): A(f'buffer_load_dwordx4 {v(R+16*h+4*i,4)}, v1, {ws}, s31 offen offset:{1024*i}')
    for t in range(2): A(f'buffer_load_ushort v{G+t}, v{vG}, {ws}, s{sG} offen offset:{32*t}')
    A('s_waitcnt vmcnt(10)')
    mf='v_mfma_f32_16x16x32_bf16'
    for w in range(4):
        for n,(kt,tt) in enumerate(((0,0),(0,1),(1,1))):
            d=v(S+4*n,4); A(f'{mf} {d}, {v(K+8*w+4*kt,4)}, {v(Q+8*w+4*tt,4)}, {d if w else 0}')
    wait_flags(A,vRF,f's{sRFo}',f's{sS}',7,slp=2)
    for w in range(2): A(f'buffer_load_dwordx4 {v(248+4*w,4)}, v1, {ws}, s{sKM} offen offset:{1024*w} sc1')
    for w in range(2): A(f'buffer_load_dwordx4 {v(VMr+4*w,4)}, v1, {ws}, s{sVM} offen offset:{1024*w} sc1')
    for n in(0,2):
        for r in range(4): A(f'v_cndmask_b32 v{S+4*n+r}, v8, v{S+4*n+r}, s[{42+2*r}:{43+2*r}]')
    for t in range(2): A(f'v_lshlrev_b32 v{G+t}, 16, v{G+t}\nv_mul_f32 v{G+t}, 0x3fb8aa3b, v{G+t}\nv_exp_f32 v{G+t}, v{G+t}')
    A(f'''v_max3_f32 v10, v{S}, v{S+1}, v{S+2}
v_max3_f32 v11, v{S+4}, v{S+5}, v{S+6}
v_max_f32 v10, v10, v{S+3}
v_max3_f32 v11, v11, v{S+7}, v{S+8}
v_add_f32 v{G}, 1.0, v{G}
v_max3_f32 v11, v11, v{S+9}, v{S+10}
v_add_f32 v{G+1}, 1.0, v{G+1}
v_max_f32 v11, v11, v{S+11}''')
    A('s_waitcnt vmcnt(2)')
    for i in range(8): A(f'v_mfma_f32_16x16x16_bf16 {v(O+4*i,4)}, {v(248+2*(i>>1),2)}, {v(244+2*(i&1),2)}, 0')
    for i in range(16): A(f'v_cvt_pk_bf16_f32 v{KMr+i}, v{O+2*i}, v{O+2*i+1}')
    for w in range(4):
        for t in range(2):
            d=v(S+12+4*t,4); A(f'{mf} {d}, {v(KMr+4*w,4)}, {v(Q+8*w+4*t,4)}, {d if w else 0}')
    def xred(op):
        for sw in('16','32'):
            for t in range(2): A(f'v_mov_b32 v{12+t}, v{10+t}')
            for t in range(2): A(f'v_permlane{sw}_swap_b32 v{10+t}, v{12+t}')
            for t in range(2): A(f'{op} v{10+t}, v{10+t}, v{12+t}')
    for t in range(2): A(f'v_max3_f32 v{10+t}, v{10+t}, v{S+12+4*t}, v{S+14+4*t}')
    xred('v_max_f32')
    for t in range(2): A(f'v_mul_f32 v{10+t}, s{sSc}, v{10+t}')
    L=[[S+i for i in range(4)]+[S+12,S+14],[S+4+i for i in range(8)]+[S+16,S+18]]
    for t in range(2):
        for x in L[t]: A(f'v_fma_f32 v{x}, v{x}, s{sSc}, -v{10+t}')
    for t in range(2):
        for x in L[t]: A(f'v_exp_f32 v{x}, v{x}')
    for i in range(2): A(f'v_cvt_pk_bf16_f32 v{P+i}, v{S+2*i}, v{S+2*i+1}')
    for i in range(4): A(f'v_cvt_pk_bf16_f32 v{P+4+i}, v{S+4+2*i}, v{S+5+2*i}')
    for t in range(2):
        for j in(0,3): A(f'v_cvt_pk_bf16_f32 v{P+8+4*t+j}, v{S+12+4*t}, v{S+14+4*t}')
    for t in range(2):
        for i in range(8): A(f'{mf} {v(O+32*t+4*i,4)}, {v(V+4*i,4)}, {v(P+4*t,4)}, 0')
        A(f'v_add_f32 v{10+t}, v{L[t][0]}, v{L[t][1]}')
        for x in L[t][2:]: A(f'v_add_f32 v{10+t}, v{10+t}, v{x}')
    A('s_waitcnt vmcnt(0)')
    for t in range(2):
        for i in range(8):
            d=v(O+32*t+4*i,4); A(f'v_mfma_f32_16x16x16_bf16 {d}, {v(VMr+2*(i>>1),2)}, {v(P+8+4*t+2*(i&1),2)}, {d}')
        if t==0:
            xred('v_add_f32')
            for u in range(2): A(f'v_mul_f32 v{10+u}, v{10+u}, v{G+u}')
            for u in range(2): A(f'v_rcp_f32 v{10+u}, v{10+u}')
    for t in range(2):
        for w in range(4):
            b=O+32*t+8*w
            for i in range(8): A(f'v_mul_f32 v{b+i}, v{b+i}, v{10+t}')
            for i in range(4): A(f'v_cvt_pk_bf16_f32 v{b+i}, v{b+2*i}, v{b+2*i+1}')
            A(f'buffer_store_dwordx4 {v(b,4)}, v{vOB}, {ws}, s{sOB} offen offset:{256*w} sc1')
        A(f's_add_u32 s{sOB}, s{sOB}, {(1<<17) if t==0 else (7<<17)}')
    A(f'''s_add_u32 s{sS}, s{sS}, 4
v_mov_b32 v7, s{sS}
s_add_u32 s{sQ}, s{sQ}, {1<<20}
s_add_u32 s{sKM}, s{sKM}, {1<<18}
s_add_u32 s{sVM}, s{sVM}, {1<<18}
s_add_u32 s{sG}, s{sG}, 256
s_waitcnt vmcnt(0)''')
    flag(A,7,sTF)
    A(f's_cmp_lt_u32 s{sS}, 64\ns_cbranch_scc1 L_t1')
    prof(A,5,pr)
    A('s_endpgm')
    def W(n,k): return a(n,k) if n<256 else v(16+n-256,k)
    B,ACC,RD=56,204,212
    vD,vT,vT2,vOl,vAl,vSl,vJ,vF,vQ,vO,vA,vS=4,5,6,7,8,9,10,11,12,13,14,15
    sCB,sRep,sL,sG,sG2,sS0,sN,sO,sA=32,33,34,35,36,37,38,39,40
    A('L_t2:'); srd(A,WA,10,5242880); srd(A,WB,4,819200); srd(A,OS,13,2621440)
    A(f'''s_sub_u32 s31, s{sB}, 32
s_mul_i32 s{sRep}, s31, 3277
s_lshr_b32 s{sRep}, s{sRep}, 16
s_mul_i32 s{sCB}, s{sRep}, 20
s_sub_u32 s{sCB}, s31, s{sCB}
s_lshl_b32 s{sCB}, s{sCB}, 6
s_mul_i32 s{sL}, s{sW}, 40960
s_mul_i32 s{sG}, s{sW}, {1024*1280}
s_add_u32 s{sG}, s{sG}, s{sCB}
s_mul_i32 s{sG2}, s{sW}, {160*1280}
s_add_u32 s{sG2}, s{sG2}, s{sCB}
v_lshrrev_b32 v2, 2, v0
v_and_b32 v3, 3, v0
v_mul_u32_u24 v{vD}, 1280, v2
v_lshl_add_u32 v{vD}, v3, 4, v{vD}
v_add_u32 v{vT}, s{sL}, v1
v_lshrrev_b32 v{vQ}, 4, v0
v_lshl_add_u32 v{vT2}, v{vQ}, 8, v{vT}
v_and_b32 v{vJ}, 3, v2
v_lshlrev_b32 v{vOl}, 18, v{vJ}
v_lshl_add_u32 v{vOl}, v{vQ}, 6, v{vOl}
v_lshl_add_u32 v{vOl}, v3, 4, v{vOl}
v_lshl_add_u32 v2, v{vJ}, 5, v3
v_mul_u32_u24 v2, 1280, v2
v_lshl_add_u32 v{vAl}, v{vQ}, 4, v2
v_lshlrev_b32 v{vF}, 3, v0''')
    def issue(k):
        for i in range(2):
            if k<32: dma(A,vD,WA,sG,(32*k+16*i)*1280,sL,(k%20)*2048+i*1024)
            else: dma(A,vD,WB,sG2,(32*(k-32)+16*i)*1280,sL,(k%20)*2048+i*1024)
    for k in range(20): issue(k)
    for k in range(37):
        A(f's_waitcnt vmcnt({2*min(19,36-k)})')
        for ct in range(2):
            for mm in range(2):
                A(f'ds_read_b64_tr_b16 {W((2*k+ct)*4+2*mm,2)}, v{vT if k<32 else vT2} offset:{(k%20)*2048+ct*8+mm*(1024 if k<32 else 256)}')
        if k+20<37: A('s_waitcnt lgkmcnt(0)'); issue(k+20)
    A(f'''v_lshlrev_b32 v2, 2, v0
s_mov_b32 s31, {AAF}''')
    wait_flags(A,2,'s31',0,B,n=3,slp=4)
    A(f'''s_mov_b32 s{sS0}, 0
s_lshl_b32 s{sO}, s{sRep}, 15
s_lshl_b32 s31, s{sW}, 13
s_add_u32 s{sO}, s{sO}, s31
s_add_u32 s{sO}, s{sO}, {OB}
s_mul_i32 s{sA}, s{sRep}, 5120
s_add_u32 s{sCB}, s{sCB}, s{sA}
s_mul_i32 s31, s{sW}, 320
s_add_u32 s{sA}, s{sA}, s31
s_add_u32 s{sA}, s{sA}, {AO}
s_lshl_b32 s31, s{sW}, 11
v_add_u32 v{vT}, s31, v1
v_mov_b32 v{vD}, 0x7ff00000
v_mov_b32 v{vT2}, 0
s_mov_b32 s41, {T1F}
s_waitcnt lgkmcnt(0)
s_barrier''')
    prof(A,4,pr)
    A(f'''L_t2L:
s_cmp_lg_u32 s{sW}, 0
s_cbranch_scc1 L_t2B
L_t2P:
buffer_load_dwordx2 v[2:3], v{vF}, {ws}, s41 offen sc1
s_mov_b32 s{sN}, 0
s_waitcnt vmcnt(0)
v_min_u32 v2, v2, v3
v_max_u32 v2, v2, v{vQ}
v_subrev_u32 v2, s{sS0}, v2''')
    for j in range(4): A(f'v_cmp_ge_u32 vcc, {j}, v2\ns_cmp_eq_u64 vcc, 0\ns_addc_u32 s{sN}, s{sN}, 0')
    LB=o.get('lb',61)
    A(f's_add_u32 s31, s{sS0}, s{sN}\ns_cmp_eq_u32 s31, 64\ns_cbranch_scc1 L_t2G\ns_min_u32 s31, s31, {LB}\ns_sub_u32 s{sN}, s31, s{sS0}')
    A(f's_cmp_lg_u32 s{sN}, 0\ns_cbranch_scc1 L_t2G\ns_sleep 4'); spin(A,'L_t2P')
    A(f'''s_mov_b32 s{sN}, 1
L_t2G:
v_mov_b32 v2, s{sN}
ds_write_b32 v{vT2}, v2 offset:8192
s_waitcnt lgkmcnt(0)
L_t2B:
s_barrier
ds_read_b32 v2, v{vT2} offset:8192
s_add_u32 s31, s{sO}, 4096
s_waitcnt lgkmcnt(0)
v_cmp_gt_u32 vcc, v2, v{vJ}
v_readfirstlane_b32 s{sN}, v2
v_cndmask_b32 v{vO}, v{vD}, v{vOl}, vcc
v_cndmask_b32 v{vA}, v{vD}, v{vAl}, vcc''')
    for k in range(37):
        if k<32: A(f'buffer_load_dwordx4 {v(B+4*k,4)}, v{vO}, {ws}, s{sO if k<16 else 31} offen offset:{256*(k%16)}')
        else: A(f'buffer_load_dwordx4 {v(B+4*k,4)}, v{vA}, {ws}, s{sA} offen offset:{64*(k-32)}')
    for k in range(37):
        A(f's_waitcnt vmcnt({36-k})')
        for ct in range(2):
            d=v(ACC+4*ct,4); A(f'{mf} {d}, {W((2*k+ct)*4,4)}, {v(B+4*k,4)}, {d if k else 0}')
    A(f'''s_lshl_b32 s31, s{sN}, 18
s_add_u32 s{sO}, s{sO}, s31
s_mul_i32 s31, s{sN}, {32*1280}
s_add_u32 s{sA}, s{sA}, s31
s_add_u32 s{sS0}, s{sS0}, s{sN}
ds_write_b128 v{vT}, {v(ACC,4)}
ds_write_b128 v{vT}, {v(ACC+4,4)} offset:1024
s_waitcnt lgkmcnt(0)
s_barrier
s_cmp_lg_u32 s{sW}, 1
s_cbranch_scc1 L_t2N''')
    for i in range(8): A(f'ds_read_b128 {v(RD+4*i,4)}, v1 offset:{1024*i}')
    A('s_waitcnt lgkmcnt(0)')
    for w in range(1,4):
        for i in range(8): A(f'v_add_f32 v{RD+i}, v{RD+i}, v{RD+8*w+i}')
    for i in range(4): A(f'v_cvt_pk_bf16_f32 v{RD+i}, v{RD+2*i}, v{RD+2*i+1}')
    A(f'''buffer_store_dwordx4 {v(RD,4)}, v{vA}, {s(OS,4)}, s{sCB} offen
s_add_u32 s{sCB}, s{sCB}, s31
L_t2N:
s_cmp_lt_u32 s{sS0}, 64
s_cbranch_scc1 L_t2L''')
    prof(A,5,pr)
```

```python
from common import *
def W(n,k): return a(n,k) if n<256 else v(96+n-256,k)
SH=147456
vL,vA,vU,vW4,vW1,vR4,vR1,vOW,vP,vPub,vWm,vFo,vFl,vD,vIx=0,1,2,4,5,6,7,8,9,10,10,12,13,14,15
vP4=11
SEL=16; ONE=20
sX,sH,sS,sRed,sML,sMR,sPb,sKV,sKM,sPS,sPR,sPD,sRF,sPF,sSc,sSl,sLim=3,36,37,38,39,40,41,42,43,44,45,46,47,48,49,50,51
sPS2=29; sPar=52; sM=54
SM='v_smfmac_f32_16x16x64_bf16'; M32='v_mfma_f32_16x16x32_bf16'; M16='v_mfma_f32_16x16x16_bf16'
slot=lambda c:(c%9)*4096
def roleR(A,o):
    pr=o.get('prof')
    A(f'''L_rec:
s_lshl_b32 s97, s{sX}, 5
s_add_u32 s97, s97, s{sH}
s_add_u32 s97, s97, 192
s_lshl_b32 s97, s97, 2
s_add_u32 s97, s97, s{sW}
s_lshl_b32 s97, s97, 8
s_add_u32 s97, s97, {PROF}''')
    prof(A,0,pr)
    A(f'''v_mov_b32 v24, v0
v_and_b32 v25, 15, v0
v_lshrrev_b32 v26, 4, v0
v_lshlrev_b32 v27, 13, v26
v_and_b32 v31, 3, v0
v_lshl_add_u32 v27, v25, 4, v27
s_mul_i32 s33, s{sW}, 36864
s_lshl_b32 s34, s{sH}, 8
s_lshl_b32 s31, s{sW}, 17
s_add_u32 s34, s34, s31
s_mul_i32 s31, s{sX}, {320*8192}
s_sub_u32 s35, {320*8192}, s31
s_add_u32 s35, s35, s34
s_add_u32 s34, s34, s31
s_mul_i32 s62, s{sH}, 163840
s_mul_i32 s31, s{sX}, 640
s_add_u32 s62, s62, s31
s_mul_i32 s31, s{sW}, 160
s_add_u32 s62, s62, s31''')
    srd(A,WA,7,5242880); srd(A,WB,10,5242880)
    def issue(c):
        if c in(10,20): A(f's_mov_b32 s{WA}, s{ptr(10-c//10)}\ns_mov_b32 s{WA+1}, s{ptr(10-c//10)+1}')
        for i in range(4):
            if c==25: dma(A,28,WB,62,32*i*1280+128,33,slot(c)+i*1024,x=' nt' if o.get('wnt') else '')
            elif c>30: dma(A,66,WB,62,(64*((c-31)>>1)+8*((c-31)&1)+16*i)*1280,33,slot(c)+i*1024,x=' nt' if o.get('wnt') else '')
            else:
                loc=(c%10<5) if c<20 else c>25
                kk=c%5 if c<25 else c-26
                dma(A,27,WA,34 if loc else 35,(64*kk+4*i)*8192,33,slot(c)+i*1024,x=' nt' if o.get('wnt') else '')
    for c in range(9): issue(c)
    A(f'''v_lshrrev_b32 v28, 1, v0
v_mul_u32_u24 v28, 1280, v28
v_and_b32 v32, 1, v0
v_lshl_add_u32 v28, v32, 4, v28
v_lshlrev_b32 v31, 3, v31
v_add_u32 v31, s33, v31
v_bfe_u32 v33, v0, 2, 1
v_bfe_u32 v34, v0, 3, 1
v_bfe_u32 v35, v0, 4, 1
v_bfe_u32 v36, v0, 5, 1
v_lshl_add_u32 v29, v34, 3, v33
v_lshl_add_u32 v29, v35, 2, v29
v_lshl_add_u32 v29, v29, 8, v31
v_mul_u32_u24 v84, 36864, v36
s_lshl_b32 s31, s{sW}, 6
s_sub_u32 s31, s31, s33
v_add3_u32 v29, v29, v84, s31
v_add_u32 v84, 73728, v29
v_lshl_add_u32 v30, v34, 4, v33
v_lshl_add_u32 v30, v35, 5, v30
v_lshl_add_u32 v30, v36, 2, v30
v_lshl_add_u32 v30, v30, 5, v31
v_add_u32 v{vR4}, {SH}, v1
v_add_u32 v{vL}, s33, v1
v_lshrrev_b32 v37, 1, v25
v_lshlrev_b32 v{vA}, 8, v26
v_lshl_add_u32 v{vA}, v32, 7, v{vA}
v_lshl_add_u32 v{vA}, v37, 4, v{vA}
v_add_u32 v{vA}, {SH}, v{vA}
s_lshl_b32 s31, s{sW}, 10
v_add_u32 v{vW4}, s31, v{vR4}
v_lshlrev_b32 v{vR1}, 2, v24
v_add_u32 v{vR1}, {SH+4096}, v{vR1}
s_lshl_b32 s31, s{sW}, 8
v_add_u32 v{vW1}, s31, v{vR1}
s_lshr_b32 s31, s{sW}, 1
s_lshl_b32 s31, s31, 10
s_and_b32 s63, s{sW}, 1
s_lshl_b32 s32, s63, 3
s_add_u32 s31, s31, s32
s_add_u32 s31, s31, 10240
v_add_u32 v{vOW}, s31, v{vR4}
v_and_b32 v38, 7, v24
v_lshlrev_b32 v{vPub}, 2, v38
v_lshl_add_u32 v{vPub}, v26, 5, v{vPub}
s_mov_b32 s100, 0xf0f0f0f0
s_mov_b32 s101, 0xf0f0f0f0
v_lshl_add_u32 v{vP}, v34, 12, v{vPub}
v_lshrrev_b32 v64, 1, v38
v_lshl_add_u32 v64, v64, 1, v35
v_lshlrev_b32 v65, 3, v32
v_lshl_add_u32 v{vPub}, v64, 4, v65
v_mul_u32_u24 v64, 1280, v64
v_add_u32 v64, v64, v65
v_lshrrev_b32 v66, 3, v24
v_mul_u32_u24 v66, 1280, v66
v_lshl_add_u32 v66, v38, 4, v66
v_lshl_add_u32 v67, v35, 2, v36
v_lshlrev_b32 v67, 9, v67
v_lshl_add_u32 v67, v25, 3, v67
v_add_u32 v67, s33, v67
v_lshlrev_b32 v{vP4}, 12, v37
v_lshl_add_u32 v{vP4}, v26, 5, v{vP4}
v_lshl_add_u32 v{vP4}, v32, 4, v{vP4}
v_or_b32 v65, v34, v36
v_cmp_eq_u32 vcc, 0, v65
v_mov_b32 v65, 0x7ff00000
v_cndmask_b32 v{vPub}, v65, v{vPub}, vcc
v_lshlrev_b32 v65, 7, v24
v_add_u32 v65, {SH-4096}, v65
s_cmp_eq_u32 s{sW}, 2
s_cselect_b64 vcc, -1, 0
v_cndmask_b32 v{vWm}, v{vPub}, v65, vcc
v_min_u32 v65, 1, v24
v_lshlrev_b32 v65, 30, v65
s_cmp_eq_u32 s{sW}, 3
s_cselect_b64 vcc, -1, 0
v_cndmask_b32 v{vWm}, v{vWm}, v65, vcc
v_lshl_add_u32 v{vFo}, v25, 2, 32
s_mov_b32 s{sPar}, 0xaaaaaaaa
s_mov_b32 s{sPar+1}, 0xaaaaaaaa
v_mov_b32 v39, 0x4444
v_mov_b32 v40, 0xeeee
v_cndmask_b32 v{vIx}, v39, v40, {s(sPar,2)}
v_mov_b32 v39, 0x3f80
v_mov_b32 v40, 1.0
v_and_b32 v41, 2, v24
v_cmp_eq_u32 vcc, 0, v41
v_cndmask_b32 v39, v40, v39, vcc
v_lshrrev_b32 v41, 2, v25
v_cmp_eq_u32 vcc, v41, v26
v_cndmask_b32 v{SEL}, 0, v39, vcc
v_mov_b32 v{SEL+1}, 0
v_mov_b32 v{SEL+2}, 0
v_mov_b32 v{SEL+3}, v{SEL}
s_mov_b32 s{sSc}, 0x3e0293ee
s_mov_b32 s{sLim}, 0x42800000
s_mov_b32 s{sSl}, -1
s_mov_b32 s{sS}, 0''')
    for i in range(4):
        A(f'v_mov_b32 v{ONE+i}, 0x3f803f80\ns_mov_b32 s{sM+2*i}, {0x11111111<<i}\ns_mov_b32 s{sM+2*i+1}, {0x11111111<<i}\nv_mov_b32 v{44+i}, -1')
    A(f'''s_add_u32 s31, s{sH}, 32
s_cmp_eq_u32 s{sW}, 1
s_cselect_b32 s31, s31, 99
s_cmp_eq_u32 s{sW}, 0
s_cselect_b32 s{sRed}, s{sH}, s31
s_mul_i32 s31, s{sX}, {64*5120}
s_add_u32 s{sML}, s31, {MEMP-SH}
s_lshl_b32 s32, s{sRed}, 7
s_add_u32 s{sPb}, s31, s32
s_add_u32 s{sPb}, s{sPb}, {MEMP}
s_lshl_b32 s{sMR}, s{sX}, 14
s_add_u32 s{sPS2}, s{sMR}, s32
s_add_u32 s{sPS2}, s{sPS2}, {MEMS}
s_sub_u32 s{sMR}, {MEMS+16384-SH}, s{sMR}
s_add_u32 s31, s31, {PART}
s_lshl_b32 s32, s{sRed}, 12
s_add_u32 s{sPR}, s31, s32
s_sub_u32 s{sPR}, s{sPR}, {SH}
s_mul_i32 s32, s{sW}, 40960
s_add_u32 s{sPS}, s31, s32
s_lshl_b32 s32, s{sH}, 7
s_add_u32 s{sPS}, s{sPS}, s32
s_mov_b32 s{sPD}, 163840
s_mov_b32 s{sPF}, s32
s_lshl_b32 s31, s{sX}, 2
s_add_u32 s31, s31, s{sW}
s_lshl_b32 s31, s31, 2
s_add_u32 s{sRF}, s32, s31
s_add_u32 s{sRF}, s{sRF}, {RF}
s_lshl_b32 s31, s{sH}, 2
s_add_u32 s31, s31, s{sW}
s_lshl_b32 s{sKV}, s31, 11
s_add_u32 s{sKV}, s{sKV}, {KX-SH}
s_mul_i32 s31, s{sX}, {VM-KM}
s_lshl_b32 s32, s{sH}, 11
s_add_u32 s32, s32, {KM-SH-10240-(1<<16)}
s_add_u32 s{sKM}, s31, s32
s_cmp_eq_u32 s{sX}, 0
s_cselect_b64 s[26:27], 0, -1''')
    wait_dbg(A,0,256,vt=42,st=31,mask=1023)
    A(f'''s_bfe_u32 s32, s31, 0xa000a
s_bfe_u32 s31, s31, 0xa0014
s_min_u32 s63, s31, s32''')
    l=A.lab(); l2=A.lab()
    A(f'''s_cmp_ge_u32 s{sRed}, 40
s_cbranch_scc1 {l}
v_lshrrev_b32 v42, 3, v24
v_lshlrev_b32 v43, 15, v42
v_lshl_add_u32 v43, v38, 4, v43
v_mul_u32_u24 v42, 5120, v42
v_lshl_add_u32 v42, v38, 4, v42''')
    for i in range(8):
        A(f's_add_u32 s31, s{sPb}, {i*40960}\nbuffer_store_dwordx4 v[44:47], v42, {s(WS,4)}, s31 offen')
        for pa in range(2): A(f's_add_u32 s31, s{sPS2}, {(i<<18)+pa*8192}\nbuffer_store_dwordx4 v[44:47], v43, {s(WS,4)}, s31 offen sc1')
    A(f's_add_u32 s31, s{sPR}, {163840}\ns_cmp_ge_u32 s63, 32\ns_cbranch_scc1 {l2}')
    for sc in(' sc1',''):
        for i in range(8): A(f'buffer_store_dwordx4 v[44:47], v{vR4}, {s(WS,4)}, s{31 if i&4 else sPR} offen offset:{1024*(i&3)}{sc}')
        A(f's_branch {l}\n{l2}:' if sc else f'{l}:')
    def wrb(c):
        for i in range(4): A(f'ds_write_b128 v{vL}, {v(48+4*i,4)} offset:{slot(c)+1024*i}')
        A('s_waitcnt lgkmcnt(0)')
    def early():
        wait_dbg(A,132,80,vt=42)
        wait_dbg(A,136,1,vt=42)
        l=A.lab(); srd(A,WA,6,10240)
        A(f'''s_and_b32 s31, s31, 2
s_lshl_b32 s31, s31, 12
s_add_u32 s{sPS2}, s{sPS2}, s31
s_add_u32 s{sMR}, s{sMR}, s31
s_lshl_b32 s32, s{sX}, 14
s_add_u32 s31, s31, s32
s_add_u32 s31, s31, {MEMS-SH}
s_cmp_ge_u32 s63, 32
s_cselect_b32 s{sML}, s{sML}, s31
s_cmp_ge_u32 s{sRed}, 40
s_cbranch_scc1 {l}
buffer_load_dword v43, v{vPub}, {s(WS,4)}, s{sPb} offen
s_mul_i32 s31, s{sX}, 640
s_lshl_b32 s32, s{sRed}, 4
s_add_u32 s31, s31, s32
buffer_load_dwordx2 v[42:43], v64, {s(WA,4)}, s31 offen
s_waitcnt vmcnt(0)
buffer_store_dwordx2 v[42:43], v{vPub}, {s(WS,4)}, s{sPS2} offen sc1
buffer_store_dwordx2 v[42:43], v{vPub}, {s(WS,4)}, s{sPb} offen
{l}:''')
        wait_dbg(A,128,4,vt=44)
        wait_flags(A,vFo,s(sPF),'0',vFl)
    for c in range(35):
        A(f's_waitcnt vmcnt({4*(min(34,max(8,c+7))-c)})')
        if c<32: A('s_barrier')
        if 0<c<27: issue(c+8)
        if 26<c<32: wrb(c-1)
        if c==10:
            l=A.lab(); A(f's_cmp_ge_u32 s{sRed}, 40\ns_cbranch_scc1 {l}\nv_mov_b32 v42, 1\ns_mov_b64 exec, 1\nbuffer_atomic_add v42, off, {s(DB,4)}, 0 offset:132 sc1\ns_mov_b64 exec, -1\n{l}:')
        if c>30:
            for i in range(8): A(f'ds_read_b64 {v(68+2*i,2)}, v67 offset:{slot(c)+1024*((i>>1)&1)+256*(i>>2)+128*(i&1)}')
            A('s_mov_b32 s31, 0x05040100\ns_mov_b32 s32, 0x07060302\ns_waitcnt lgkmcnt(0)')
            for n in range(4):
                for i in range(4): A(f'v_perm_b32 v{48+4*n+i}, v{70+4*i+(n>>1)}, v{68+4*i+(n>>1)}, s{31+(n&1)}')
        for j in range(2 if c<31 else 0):
            for hh in range(2):
                for mm in range(2):
                    r=8*j+4*hh+2*mm; d=W(16*c+r,2) if c<26 else v(48+r,2)
                    if c==25: A(f'ds_read_b64_tr_b16 {d}, v30 offset:{slot(c)+(64*j+8*hh+2*mm)*32}')
                    else: A(f'ds_read_b64_tr_b16 {d}, v{84 if hh else 29} offset:{slot(c)+512*mm+32*j}')
        A('s_waitcnt lgkmcnt(0)')
        if c==o.get('ew',99): early()
        if c>30: wrb(c)
    prof(A,1,pr)
    if o.get('ew',99)>34: early()
    prof(A,2,pr)
    A(f's_mov_b32 s96, s{sSpin}\ns_mov_b32 s34, 0x3f803f80\ns_mov_b32 s35, s34')
    for d,c,j in((60,26,0),(68,26,1),(80,27,0),(88,27,1)):
        for hh in range(2): A(f'ds_read_b128 {v(d+4*hh,4)}, v{vL} offset:{slot(c)+2048*j+1024*hh}')
    A('s_cmp_lt_u32 s63, 32\ns_cbranch_scc1 L_rS')
    for md in 'FS':
        A(f'L_r{md}:\ns_cmp_lt_u32 s{sRed}, 40\ns_cbranch_scc1 L_r{md}R\ns_cmp_eq_u32 s{sW}, 2\ns_cbranch_scc1 L_r{md}2\nv_mov_b32 v{vFl}, 0\ns_cmp_eq_u32 s{sW}, 3\ns_cbranch_scc1 L_r{md}3')
        for ro in 'NR23': loop(A,o,md,ro)
    A(f'L_rX:\nbuffer_store_dwordx2 v[2:3], v{vOW}, {s(WS,4)}, s{sKM} offen sc1\ns_waitcnt vmcnt(0)\ns_barrier\nv_mov_b32 v24, 64'); flag(A,24,sRF)
    prof(A,3,pr)
    if pr: A(f's_sub_u32 s31, s96, s{sSpin}\nv_mov_b32 v3, s31\ns_mov_b64 exec, 1\nbuffer_store_dword v3, off, {s(WS,4)}, s97 offset:64')
    A('s_endpgm')
def loop(A,o,md,ro):
    lb=md+ro
    sc=' sc1' if md=='S' else ''; ws=s(WS,4); RP=o.get('rp',2); LP=o.get('lp',0) if md=='F' else 0; pr=o.get('prof')
    l1=' nt' if md=='F' and o.get('nt',0)&1 else ' sc1'; l2=' nt' if md=='F' and o.get('nt',0)&2 else ' sc1'
    def tp(k,g=0):
        if o.get('tp') and md=='F' and (k==0 or g==o.get('tq',0)): A(f's_memtime s[{64+2*k}:{65+2*k}]')
    def tile(d,c,j):
        for hh in range(2): A(f'ds_read_b128 {v(d+4*hh,4)}, v{vL} offset:{slot(c)+2048*j+1024*hh if c<31 else slot(31+2*j+hh)+1024*(c-31)}')
    sm=lambda d,x,w: A(f'{SM} {v(d,4)}, {v(x,4)}, {w}, v{vIx}')
    BB=[60,68,80,88]
    def poll(so,x=76,d=vD): A(f'buffer_load_dwordx4 {v(x,4)}, v{vW4}, {ws}, s{so} offen sc1\nbuffer_load_dword v{d}, v{vW1}, {ws}, s{so} offen sc1')
    ER=o.get('er',0) if md=='F' else 0
    def chk(x,d,tmp,off,e): A(f'v_max3_u32 v{tmp}, v{x}, v{x+1}, v{d}\nv_max3_u32 v{tmp}, v{x+2}, v{x+3}, v{tmp}\nds_write_b128 v{vW4}, {v(x,4)} offset:{off}\nds_write_b32 v{vW1}, v{d} offset:{off}\nv_cmp_eq_u32 vcc, -1, v{tmp}\ns_cbranch_vccz {e}')
    def pwait(so,off,tmp,n,mid=None):
        t,e=A.lab(),A.lab()
        A(f'''s_waitcnt vmcnt({n})
{t}:
ds_write_b128 v{vW4}, v[76:79] offset:{off}
ds_write_b32 v{vW1}, v{vD} offset:{off}
v_max3_u32 v{tmp}, v76, v77, v{vD}
v_max3_u32 v{tmp}, v78, v79, v{tmp}
v_cmp_eq_u32 vcc, -1, v{tmp}
s_cbranch_vccz {e}'''); poll(so); A('s_waitcnt vmcnt(0)'); spin(A,t)
        A(f'{e}:')
        if mid: mid()
        A('s_waitcnt lgkmcnt(0)')
    def rpoll(): poll(sMR)
    A(f'L_r{lb}:\ns_barrier')
    if o.get('dl'): A(f's_sleep {o["dl"]}')
    Lr=(ONE,SEL+1) if ER else (76,vD)
    poll(sML,*Lr); A(f's_waitcnt vmcnt({4 if md=="F" else 3})')
    for i in range(12): A(f'v_mov_b64 {v(24+2*i,2)}, 0')
    if ER:
        t,e=A.lab(),A.lab()
        if LP: poll(sML,*Lr)
        rpoll(); A(f's_waitcnt vmcnt({4 if LP else 2})'); chk(*Lr,48,0,e)
        if LP: A('s_waitcnt vmcnt(2)'); chk(*Lr,48,0,e)
        A(f'{t}:\ns_mov_b64 exec, vcc'); poll(sML,*Lr); A('s_mov_b64 exec, -1\ns_waitcnt vmcnt(0)'); chk(*Lr,48,0,e); spin(A,t)
        A(f'{e}:\ns_waitcnt lgkmcnt(0)')
    elif LP:
        t,e=A.lab(),A.lab()
        if o.get('dm'): A(f's_sleep {o["dm"]}')
        if LP==1: A('s_mov_b64 exec, 0')
        A(f'{t}:'); poll(sML)
        A(f'''s_mov_b64 exec, -1
s_waitcnt vmcnt(2)
v_max3_u32 v48, v76, v77, v{vD}
v_max3_u32 v48, v78, v79, v48
ds_write_b128 v{vW4}, v[76:79]
ds_write_b32 v{vW1}, v{vD}
v_cmp_eq_u32 vcc, -1, v48
s_cbranch_vccz {e}
s_mov_b64 exec, vcc'''); spin(A,t); A(f's_mov_b64 exec, -1\n{e}:\ns_waitcnt lgkmcnt(0)')
    else: pwait(sML,0,48,0)
    if RP<0: rpoll()
    A('s_barrier')
    if o.get('tp'): A('s_mov_b32 s78, s64\ns_mov_b32 s66, s76')
    tp(0)
    rdA=lambda d,k: A(f'ds_read_b128 {v(d,4)}, v{vA} offset:{1024*k}')
    for k in range(3): rdA(48+4*k,k)
    q=['A0','A1','A2']
    def wait(x):
        if x in q:
            i=len(q)-1-q[::-1].index(x); n=len(q)-1-i; del q[:i+1]; A(f's_waitcnt lgkmcnt({n})')
    cvt=lambda d,x,y: A(f'v_cvt_pk_bf16_f32 v{d}, v{x}, v{y}')
    add=lambda d,x,y: A(f'v_add_f32 v{d}, v{x}, v{y}')
    pk=lambda d,x,y: A(f'v_pk_add_f32 {v(d,2)}, {v(x,2)}, {v(y,2)}')
    def nx(L,n=1):
        for _ in range(n): L.pop(0)()
    PW=o.get('pw',1)
    kvl=[f'buffer_load_dwordx4 {v(80+4*(i^2),4)}, v{vR4}, {ws}, s{31 if i>1 else sKV} offen offset:{1024*(i&1)}' for i in(2,0,1,3)]
    A(f's_add_u32 s31, s{sKV}, {VX-KX}')
    if ro=='2': A(f's_add_u32 s32, s{sS}, 1\ns_min_u32 s32, s32, 63')
    for k in range(5-PW):
        x=48+4*(k%3)
        if k==RP and ER!=1: rpoll()
        if ER and k==o.get('ck',3):
            t,e=A.lab(),A.lab()
            A(f's_waitcnt vmcnt({2*ER-2})'); chk(76,vD,ONE,5120,e)
            if ER==2: A('s_waitcnt vmcnt(0)'); chk(76,vD,ONE,5120,e)
            A(f'{t}:'); rpoll(); A('s_waitcnt vmcnt(0)'); chk(76,vD,ONE,5120,e); spin(A,t); A(f'{e}:'); q+=['W','W']
        wait(f'A{k}')
        for j in range(2):
            i=2*k+j
            wait(f'B{i}'); sm(32+4*j,x,v(BB[i%4],8))
            if i+4<10: tile(BB[i%4],26+(i+4)//2,i%2); q+=[f'B{i+4}']*2
            if i>=7 and kvl: A(kvl.pop(0))
            sm(24+4*j,x,W(16*k+8*j,8))
            if i>=7 and kvl: A(kvl.pop(0))
            if k<2: sm(40+4*j,x,W(16*(10+k)+8*j,8))
        if k+3<5: rdA(x,k+3); q.append(f'A{k+3}')
    if ER:
        A('s_waitcnt lgkmcnt(0)\ns_barrier')
        for j in range(2): sm(32+4*j,52,v(BB[j],8)); A(kvl.pop(0))
        tp(2); tp(2,1)
        for k in range(4): rdA(60+4*k,5+k)
        sm(24,52,W(64,8)); A(f'v_mov_b64 {v(ONE,2)}, s[34:35]'); sm(28,52,W(72,8)); A(f'v_mov_b64 {v(ONE+2,2)}, s[34:35]\ns_waitcnt vmcnt(4)'); rdA(76,9); A(f'v_mov_b32 v{SEL+1}, 0')
    elif PW:
        def mid():
            A('s_waitcnt lgkmcnt(2)')
            for j in range(2): sm(32+4*j,52,v(BB[j],8)); A(kvl.pop(0))
        pwait(sMR,5120,vD,2,mid)
    else: pwait(sMR,5120,vD,4)
    if not ER:
        A(f's_add_u32 s{sKV}, s{sKV}, {1<<18}\ns_add_u32 s{sPb}, s{sPb}, 5120')
        if ro=='2': A(f's_add_u32 s31, s31, {1<<18}\nv_cmp_ge_u32 vcc, s32, v{vFl}')
        A('s_barrier'); tp(2); tp(2,1)
        for k in range(5): rdA(60+4*k,5+k)
    vl=[lambda k=k,j=j: sm(40+4*j,48+4*(k%3),W(16*(10+k)+8*j,8)) for k in(2,3,4) for j in range(2)]
    qs=[lambda k=k,j=j: (A(f's_waitcnt lgkmcnt({4-k})') if j==0 else 0,sm(24+4*j,60+4*k,W(16*(5+k)+8*j,8))) for k in range(5) for j in range(2)]
    ks=[lambda k=k,j=j: sm(32+4*j,60+4*k,W(16*(20+k)+8*j,8)) for k in range(5) for j in range(2)]
    vs=[lambda k=k,j=j: sm(40+4*j,60+4*k,W(16*(15+k)+8*j,8)) for k in range(5) for j in range(2)]
    if PW and not ER: vl=[lambda j=j: sm(24+4*j,52,W(64+8*j,8)) for j in range(2)]+vl
    km=f'buffer_store_dwordx2 v[2:3], v{vOW}, {ws}, s{sKM} offen sc1'
    c0={'N':[km],'R':[f'buffer_load_dword v{vD}, v{vPub}, {ws}, s{sPb} offen',km],
     '2':[f's_cbranch_vccnz L_rP{lb}\nL_rPb{lb}:\nbuffer_load_dword v{vD}, v{vWm}, {ws}, s{sKV} offen',f'buffer_load_dword v{vD}, v{vWm}, {ws}, s31 offen',km,f'buffer_load_dword v{vFl}, v{vFo}, {ws}, s{sPF} offen sc1'],
     '3':[km,f'buffer_store_dword v{vFl}, v{vWm}, {ws}, s{sRF} offen sc1',f'v_mov_b32 v{vFl}, s{sS}']}[ro]
    c0+=[f's_add_u32 s{sKM}, s{sKM}, {1<<16}\ns_add_u32 s{sML}, s{sML}, {5120 if md=="F" else 32768}',f's_add_u32 s{sMR}, s{sMR}, 32768\ns_add_u32 s{sPS2}, s{sPS2}, 32768']
    while vl:
        nx(vl)
        if c0: A(c0.pop(0))
    assert not c0
    tp(3,1)
    nv={'N':1,'R':6,'2':4,'3':2}[ro]; ch=[]
    if ro=='R': ch=[f's_add_u32 s31, s{sPR}, s{sPD}\nv_mov_b64 v[56:57], -1','v_mov_b64 v[58:59], -1','']+[x for i in range(4) for x in(f'buffer_store_dwordx4 v[56:59], v{vR4}, {ws}, s31 offen offset:{1024*i}{sc}','')]
    for i in range(10):
        nx(qs)
        if i<len(ch) and ch[i]: A(ch[i])
    cnd=lambda d,x,y,m=sPar: A(f'v_cndmask_b32 v{d}, v{x}, v{y}, {s(m,2)}')
    dpp=lambda d,x,p: A(f'v_mov_b32_dpp v{d}, v{x} quad_perm:[{p},{p},{p+2},{p+2}] row_mask:0xf bank_mask:0xf')
    ex=lambda d,x: A(f'v_exp_f32 v{d}, v{x}')
    if o.get('ts') and lb=='F3':
        A(f'v_mov_b32 v58, s64\nv_mov_b32 v59, s68\ns_lshl_b32 s31, s{sS}, 2\ns_add_u32 s31, s31, s97\ns_lshl_b32 s31, s31, 1\ns_add_u32 s31, s31, 0x40000\nbuffer_store_dwordx2 v[58:59], v{vWm}, {ws}, s31 offen'); nv+=1
    tp(4,1); nx(ks,2)
    add(24,24,25); add(25,26,27); nx(ks); add(26,28,29); add(27,30,31); nx(ks)
    for i in(24,26): A(f'v_pk_mul_f32 {v(i,2)}, {v(i,2)}, {s(sSc-1,2)} op_sel:[0,1] op_sel_hi:[1,1]')
    nx(ks); cvt(48,24,25); cvt(49,26,27); nx(ks)
    A(f'{M16} v[24:27], v[48:49], {v(SEL,2)}, 0\n{M16} v[28:31], v[48:49], {v(SEL+2,2)}, 0')
    nx(ks,2); cvt(52,24,25); cvt(53,26,27); nx(ks); cvt(54,28,29); cvt(55,30,31); nx(ks); tp(5,1)
    A(f's_waitcnt vmcnt({nv})\n{M32} v[24:27], v[88:91], v[52:55], 0\n{M32} v[28:31], v[92:95], v[52:55], 0')
    add(32,32,33); add(33,34,35); cvt(50,32,33)
    add(34,36,37); add(35,38,39); cvt(51,34,35)
    cnd(24,24,28); cnd(25,25,29)
    A(f'{M16} v[32:35], v[50:51], {v(SEL,2)}, 0'); cnd(26,26,30); cnd(27,27,31)
    A(f'ds_write_b128 v{vW4}, v[24:27]\n{M16} v[36:39], v[50:51], {v(SEL+2,2)}, 0')
    A('v_mov_b64 v[2:3], v[50:51]'); nx(vs)
    cvt(56,32,33); cvt(57,34,35); cvt(58,36,37); cvt(59,38,39); nx(vs,o.get('g1',0))
    def rdS():
        for i,d in enumerate((24,28,88,92)): A(f'ds_read_b128 {v(d,4)}, v{vR4} offset:{1024*i}')
    A(f'{M32} v[32:35], v[56:59], v[52:55], 0\ns_waitcnt lgkmcnt(0)\ns_barrier'); tp(3); tp(2,2); tp(6,1)
    rdS(); nx(vs); cnd(48,32,34); A(f'ds_write_b32 v{vW1}, v48'); nx(vs)
    A('v_mov_b32 v33, 0'); nx(vs); A('v_mov_b32 v34, 0'); nx(vs,len(vs)-o.get('g3',1))
    A('s_waitcnt lgkmcnt(3)'); pk(24,24,28); pk(26,26,30)
    A('s_waitcnt lgkmcnt(0)\ns_barrier'); tp(3,2)
    A(f'ds_read2st64_b32 v[48:49], v{vR1} offset0:0 offset1:1\nds_read2st64_b32 v[50:51], v{vR1} offset0:2 offset1:3')
    def softx(f):
        pk(88,88,92); pk(90,90,94); f(); pk(24,24,88); pk(26,26,90); f(0)
        ex(28,24); ex(29,25); f(); ex(30,26); ex(31,27); f(); A('v_max3_f32 v57, |v24|, |v25|, |v26|'); cvt(28,28,29); cvt(29,30,31); f()
        A('v_max_f32 v57, |v27|, v57')
        dpp(24,28,0); dpp(25,29,0); dpp(26,28,1); dpp(27,29,1)
    def softm(f):
        A(f'{M32} v[28:31], {v(ONE,4)}, v[24:27], 0'); f(0); A(f'{M32} v[88:91], v[80:83], v[24:27], 0'); ex(36,56)
        A(f'{M32} v[92:95], v[84:87], v[24:27], 0'); f(1); dpp(37,36,0); dpp(38,36,1); f(2); cvt(32,37,38); cvt(35,37,38); f(3)
        A(f'{M16} v[28:31], {v(ONE,2)}, v[32:33], v[28:31]'); f(4)
        A(f'{M16} v[88:91], v[58:59], v[32:33], v[88:91]'); f(5); A(f'{M16} v[92:95], v[58:59], v[34:35], v[92:95]')
    vs+=[lambda:tile(64,32,0),lambda:tile(72,31,1)]+[lambda:0]*5
    softx(lambda *_: nx(vs)); tp(4,2)
    A('s_waitcnt lgkmcnt(4)'); pk(48,48,50)
    softm(lambda i:[lambda:add(56,48,49),lambda:(tile(48,32,1),add(58,40,41),add(59,42,43)),lambda:(add(44,44,45),add(45,46,47)),lambda:(cvt(58,58,59),cvt(59,44,45)),
      lambda:(tile(80,31,0),A('v_max_f32 v57, |v56|, v57')),lambda:(A(f'v_cmp_nge_f32 vcc, s{sLim}, v57'))][i]())
    A(f's_cbranch_vccnz L_rM{lb}\nL_rMb{lb}:\nv_rcp_f32 v28, v28'); tp(5,2)
    cnd(2,2,58,26); cnd(3,3,59,26); A(f's_cmp_eq_u32 s{sS}, 63\ns_cbranch_scc1 L_rX')
    for i in range(4): cnd(40+i,88+i,92+i)
    A('v_pk_mul_f32 v[40:41], v[40:41], v[28:29] op_sel_hi:[1,0]\nv_pk_mul_f32 v[42:43], v[42:43], v[28:29] op_sel_hi:[1,0]')
    cvt(40,40,41); cvt(41,42,43)
    A(f'ds_write_b64 v{vOW}, v[40:41]')
    for b in(44,46,60,62): A(f'v_mov_b64 {v(b,2)}, 0')
    A('s_waitcnt lgkmcnt(0)'); tp(6,2); A('s_barrier'); tp(4)
    A(f'ds_read_b128 v[32:35], v{vR4} offset:10240\nds_read_b128 v[36:39], v{vR4} offset:11264'); tile(88,33,0)
    for b in(24,26,28,30,56,58): A(f'v_mov_b64 {v(b,2)}, 0')
    A(f's_add_u32 s31, s{sPS}, 32768')
    acc={1:44,2:60,0:24,3:28,4:56}
    def post(n,f=None):
        b=acc[n]; add(b,b,b+1); add(b+1,b+2,b+3)
        if f: f()
        cvt(39+n if n else b,b,b+1)
        if n==0: A(f'buffer_store_dword v{b}, v{vP}, {ws}, s31 offen{sc}')
        if n==4: A(f'buffer_store_dwordx4 v[40:43], v{vP4}, {ws}, s{sPS} offen{sc}')
    A('s_waitcnt lgkmcnt(3)'); sm(44,32,v(80,8)); tile(80,33,1)
    A('s_waitcnt lgkmcnt(4)'); sm(44,36,v(72,8)); tile(72,34,0)
    sm(60,32,v(64,8)); tile(64,34,1); sm(60,36,v(48,8))
    sm(24,32,W(400,8)); post(1,lambda:sm(24,36,W(408,8)))
    A('s_waitcnt lgkmcnt(6)'); sm(28,32,v(88,8)); A('s_waitcnt lgkmcnt(4)'); post(2,lambda:sm(28,36,v(80,8)))
    A('s_waitcnt lgkmcnt(2)'); sm(56,32,v(72,8)); A('s_waitcnt lgkmcnt(0)'); post(0,lambda:sm(56,36,v(64,8)))
    post(3); post(4); tp(5)
    t,e,x=A.lab(),A.lab(),A.lab()
    def rset(b):
        for i in range(4): A(f'buffer_load_dwordx4 {v(b+4*i,4)}, v{vR4}, {ws}, s{sPR} offen offset:{1024*i} sc1')
    def rchk(b0):
        for i in range(4):
            b=b0+4*i
            A(f's_waitcnt vmcnt({7-i})\n{M32} v[56:59], v[76:79], {v(b,4)}, {"v[56:59]" if i else 0}\nv_max3_u32 v{vD}, v{b}, v{b+1}, {"0" if i==0 else v(vD)}\nv_max3_u32 v{vD}, v{b+2}, v{b+3}, v{vD}')
        A(f'v_cmp_eq_u32 vcc, -1, v{vD}\ns_cbranch_vccz {e}')
    tile(60,26,0); tile(68,26,1); tile(80,27,0); tile(88,27,1)
    A(f's_add_u32 s{sPS}, s{sPS}, s{sPD}\ns_add_u32 s{sS}, s{sS}, 1')
    if ro=='R':
        if o.get('da'): A(f's_sleep {o["da"]}')
        rset(24)
        A(f'v_mov_b32 v79, 0x3f80\nv_cndmask_b32 v79, v79, 1.0, s[100:101]')
        for i in range(4): A(f'v_cndmask_b32 v{76+i}, 0, v79, {s(sM+2*i,2)}')
        if o.get('db',1): A(f's_sleep {o.get("db",1)}')
        if o.get('rm') and md=='F':
            A(f'{t}:'); rset(24); A('s_mov_b64 exec, -1')
            for i in range(4):
                b=24+4*i
                A(f's_waitcnt vmcnt({7-i})\nv_max3_u32 v{vD}, v{b}, v{b+1}, {"0" if i==0 else v(vD)}\nv_max3_u32 v{vD}, v{b+2}, v{b+3}, v{vD}\n{M32} v[56:59], v[76:79], {v(b,4)}, {"v[56:59]" if i else 0}')
            A(f'v_cmp_eq_u32 vcc, -1, v{vD}\ns_cbranch_vccz {e}\ns_mov_b64 exec, vcc'); spin(A,t); A('s_mov_b64 exec, -1')
        else: A(f'{t}:'); rset(40); rchk(24); rset(24); rchk(40); spin(A,t)
        A(f'{e}:')
        for i in range(4): A(f'v_add_f32_dpp v{56+i}, v{56+i}, v{56+i} row_ror:8 row_mask:0xf bank_mask:0xf')
        cvt(56,56,57); cvt(57,58,59)
        A(f'buffer_store_dwordx2 v[56:57], v{vPub}, {ws}, s{sPS2} offen sc1')
        if md=='F': A(f'buffer_store_dwordx2 v[56:57], v{vPub}, {ws}, s{sPb} offen')
        tp(6)
        A(f's_add_u32 s{sPR}, s{sPR}, s{sPD}')
    A(f's_sub_u32 s{sPD}, 0, s{sPD}')
    if o.get('tp') and md=='F':
        l=A.lab(); A(f's_cmp_lg_u32 s{sS}, {o["tp"]}\ns_cbranch_scc1 {l}\ns_waitcnt lgkmcnt(0)\ns_mov_b64 exec, 1')
        for k in range(8): A(f'v_mov_b32 v58, s{64+2*k}\nbuffer_store_dword v58, off, {ws}, s97 offset:{32+4*k}')
        A(f's_mov_b64 exec, -1\ns_waitcnt vmcnt(0)\n{l}:')
    A(f's_branch L_r{lb}')
    if ro=='2': A(f'L_rP{lb}:'); wait_flags(A,vFo,s(sPF),'s32',vFl); A(f's_branch L_rPb{lb}')
    A(f'L_rM{lb}:\ns_add_u32 s31, s{sKV}, {VX-KX-(1<<18)}\ns_waitcnt lgkmcnt(0)\ns_nop 7\ns_nop 7')
    for i in range(2): A(f'buffer_load_dwordx4 {v(80+4*i,4)}, v{vR4}, {ws}, s31 offen offset:{1024*i}')
    rdS(); A('s_waitcnt vmcnt(0) lgkmcnt(0)'); pk(24,24,28); pk(26,26,30)
    def mx(a=1):
        if a: return
        A('''v_max3_f32 v57, v24, v25, v26
v_max3_f32 v57, v27, v56, v57
v_mov_b32_dpp v44, v57 quad_perm:[1,0,3,2] row_mask:0xf bank_mask:0xf
v_max_f32 v57, v57, v44
v_mov_b32 v44, v57
v_permlane16_swap_b32 v44, v57
v_max_f32 v57, v57, v44
v_mov_b32 v44, v57
v_permlane32_swap_b32 v44, v57
v_max_f32 v57, v57, v44''')
        for i in(24,25,26,27,56): A(f'v_sub_f32 v{i}, v{i}, v57')
    softx(mx); softm(lambda i:0); tile(80,31,0)
    A(f's_nop 7\ns_nop 7\ns_branch L_rMb{lb}')
```

```python
from common import *
def KA(t): return a(6*t,4)
def KB(t): return a(6*t+4,2)
def VA(c): return a(96+4*c,4)
def roleA(A,o):
    pr=o.get('prof'); ws=s(WS,4)
    vQ,vQ2,vO,vO2,vZ,vL4,vG=4,5,6,7,8,9,10
    Q,QN,C,S0,P,O=16,24,32,48,80,96
    sTok,sN,sT,sMode,sQ,sLW=32,33,34,35,36,37
    MX=49152; BAD=MX+4096
    A(f'''v_lshlrev_b32 v{vL4}, 2, v0
s_mov_b32 s38, {APF}''')
    wait_flags(A,vL4,'s38',0,12,n=3,slp=4)
    A(f'''v_lshrrev_b32 v2, 5, v0
v_and_b32 v3, 31, v0
v_cmp_eq_u32 vcc, 0, v2
v_mov_b32 v12, 0x7ff00000
v_mul_u32_u24 v13, 40, v3
v_lshl_add_u32 v{vQ}, v2, 4, v13
v_lshl_add_u32 v{vO}, v2, 3, v13
v_add_u32 v13, 32, v13
v_cndmask_b32 v{vQ2}, v12, v13, vcc
v_and_b32 v13, 19, v3
v_and_b32 v14, 4, v3
v_lshl_add_u32 v13, v14, 1, v13
v_and_b32 v14, 8, v3
v_lshrrev_b32 v14, 1, v14
v_add_u32 v13, v13, v14
v_mul_u32_u24 v13, 40, v13
v_add_u32 v14, 32, v13
v_cndmask_b32 v14, v12, v14, vcc
v_lshl_add_u32 v13, v2, 4, v13
v_lshlrev_b32 v15, {5 if o.get('av',0) else 12}, v3
v_lshl_add_u32 v15, v2, 4, v15
v_cmp_ge_u32 vcc, 20, v3
v_cndmask_b32 v15, v12, v15, vcc
v_lshlrev_b32 v{vZ}, 4, v3
s_mul_i32 s38, s{sW}, {512*40}
s_add_u32 s38, s38, {AK}
s_lshl_b32 s39, s{sW}, {15 if o.get('av',0) else 10}
s_add_u32 s39, s39, {AV2 if o.get('av',0) else AVT}
s_mul_i32 s{sTok}, s{sB}, 3
s_sub_u32 s{sTok}, s{sTok}, 64
s_cmp_lt_u32 s{sB}, 32
s_cselect_b32 s{sTok}, s{sB}, s{sTok}
s_cselect_b32 s{sN}, 1, 3
s_lshl_b32 s{sTok}, s{sTok}, 2
s_mul_i32 s{sLW}, s{sW}, 3072''')
    for t in range(16):
        A(f'buffer_load_dwordx4 {KA(t)}, v13, {ws}, s38 offen offset:{(t%3)*1280}\nbuffer_load_dwordx2 {KB(t)}, v14, {ws}, s38 offen offset:{(t%3)*1280}')
        if t%3==2: A('s_add_u32 s38, s38, 3840')
        for c in(2*t,2*t+1): A(f'buffer_load_dwordx4 {VA(c)}, v15, {ws}, s39 offen offset:{1024*(c%4) if o.get("av",0) else 32*c}')
        if o.get('av',0) and t%2: A('s_add_u32 s39, s39, 4096')
        if t==11: A('s_waitcnt vmcnt(16)')
    def ldq(): A(f'buffer_load_dwordx4 {v(QN,4)}, v{vQ}, {ws}, s{sQ} offen\nbuffer_load_dwordx2 {v(QN+4,2)}, v{vQ2}, {ws}, s{sQ} offen\ns_add_u32 s{sQ}, s{sQ}, 1280')
    def q0(): A(f's_mul_i32 s{sQ}, s{sTok}, 1280\ns_add_u32 s{sQ}, s{sQ}, {AQ}\ns_mov_b32 s{sT}, 0'); ldq()
    def nxq():
        A('s_waitcnt vmcnt(0)')
        for i in range(6): A(f'v_mov_b32 v{Q+i}, v{QN+i}')
        ldq()
    def qk1(t,c): A(f'v_mfma_f32_32x32x16_bf16 {v(S0+16*(t&1),16)}, {KA(t)}, {v(Q,4)}, {c}')
    def qk2(t): A(f'v_mfma_f32_32x32x8_bf16 {v(S0+16*(t&1),16)}, {KB(t)}, {v(Q+4,2)}, {v(S0+16*(t&1),16)}')
    q0()
    A(f'L_aI:\ns_mov_b32 s{sMode}, 0')
    for i in range(16): A(f'v_mov_b32 v{C+i}, 0')
    A(f'''L_aR:
s_add_u32 s38, s{sTok}, s{sW}
s_lshl_b32 s38, s38, 1
s_add_u32 s38, s38, {AVT+21*4096}
buffer_load_ushort v{vG}, off, {ws}, s38
v_add_u32 v11, s{sLW}, v1
L_aT:''')
    nxq()
    A(f's_cmp_eq_u32 s{sMode}, 0\ns_cbranch_scc1 L_aF\ns_lshl_b32 s38, s{sT}, 10\nv_lshrrev_b32 v12, 2, v{vZ}\nv_add_u32 v12, s38, v12')
    for i in range(8): A(f'ds_read_b32 v{C+i}, v12 offset:{MX+128*i}')
    A('s_waitcnt lgkmcnt(0)')
    for i in range(1,8): A(f'v_max_f32 v{C}, v{C}, v{C+i}')
    A(f'v_sub_f32 v{C}, 0, v{C}')
    for i in range(1,16): A(f'v_mov_b32 v{C+i}, v{C}')
    A('L_aF:')
    qk1(0,v(C,16)); qk2(0)
    for t in range(16):
        S=S0+16*(t&1); ex=lambda i:A(f'v_exp_f32 v{S+i}, v{S+i}'); cv=lambda i:A(f'v_cvt_pk_bf16_f32 v{P+i}, v{S+2*i}, v{S+2*i+1}')
        pv=lambda c:A(f'v_mfma_f32_32x32x16_bf16 {v(O,16)}, {VA(c)}, {v(P+4*(c&1),4)}, {v(O,16) if c else 0}')
        if t<15: qk1(t+1,v(C,16))
        for i in range(4): ex(i)
        if t: pv(2*t-1)
        for i in range(4,8): ex(i)
        cv(0);cv(1)
        if t<15: qk2(t+1)
        ex(8);cv(2);ex(9);cv(3);ex(10);ex(11)
        pv(2*t)
        for i in range(12,16): ex(i)
        for i in range(4,8): cv(i)
    pv(31)
    for i in range(3): A(f'ds_write_b128 v11, {v(O+4*i,4)} offset:{1024*i}')
    A(f'''v_add_u32 v11, 12288, v11
s_add_u32 s{sT}, s{sT}, 1
s_cmp_lt_u32 s{sT}, 4
s_cbranch_scc1 L_aT
s_mov_b32 s{sT}, 0
s_lshl_b32 s38, s{sLW}, 2
v_add_u32 v12, s38, v1
v_add_u32 v13, s38, v{vZ}
s_waitcnt lgkmcnt(0)
s_barrier''')
    for w in range(4):
        A(f'ds_read_b32 v{P+w}, v13 offset:{3072*w+2048+512}')
        for i in range(3): A(f'ds_read_b128 {v(112+12*w+4*i,4)}, v12 offset:{3072*w+1024*i}')
    A(f'''v_lshlrev_b32 v{vG}, 16, v{vG}
v_mul_f32 v{vG}, 0xbfb8aa3b, v{vG}
v_exp_f32 v{vG}, v{vG}
s_waitcnt lgkmcnt(0)
v_add_f32 v{P}, v{P}, v{P+1}
v_add_f32 v{P+2}, v{P+2}, v{P+3}
v_add_f32 v{vG}, 1.0, v{vG}
v_add_f32 v{P}, v{P}, v{P+2}
v_rcp_f32 v{vG}, v{vG}
v_rcp_f32 v{P+1}, v{P}
v_subrev_u32 v{P}, 0x21800000, v{P}
v_cmp_le_u32 vcc, 0x3c000000, v{P}
v_mul_f32 v{vG}, v{vG}, v{P+1}
s_or_b32 s38, vcc_lo, vcc_hi
v_mov_b32 v12, s38
s_lshl_b32 s39, s{sW}, 2
v_mov_b32 v13, s39
ds_write_b32 v13, v12 offset:{BAD}
v_mov_b32 v13, 0''')
    for w in range(1,4):
        for i in range(12): A(f'v_add_f32 v{112+i}, v{112+i}, v{112+12*w+i}')
    A(f's_waitcnt lgkmcnt(0)\ns_barrier\nds_read_b128 {v(P,4)}, v13 offset:{BAD}')
    for i in range(12): A(f'v_mul_f32 v{112+i}, v{112+i}, v{vG}')
    for i in range(6): A(f'v_cvt_pk_bf16_f32 v{112+i}, v{112+2*i}, v{113+2*i}')
    A(f'''s_waitcnt lgkmcnt(0)
v_or3_b32 v{P}, v{P}, v{P+1}, v{P+2}
v_or_b32 v{P}, v{P}, v{P+3}
v_readfirstlane_b32 s38, v{P}
s_cmp_lg_u32 s{sMode}, 0
s_cselect_b32 s38, 0, s38
s_cmp_lg_u32 s38, 0
s_cbranch_scc1 L_aS
s_add_u32 s38, s{sTok}, s{sW}
s_mul_i32 s38, s38, 1280
s_add_u32 s38, s38, {AO}
buffer_store_dwordx2 v[112:113], v{vO}, {ws}, s38 offen sc1
buffer_store_dwordx2 v[114:115], v{vO}, {ws}, s38 offen offset:16 sc1
buffer_store_dwordx2 v[116:117], v{vQ2}, {ws}, s38 offen sc1
s_add_u32 s{sTok}, s{sTok}, 4
s_sub_u32 s{sN}, s{sN}, 1
s_cmp_lg_u32 s{sN}, 0
s_cbranch_scc1 L_aI
s_branch L_aE
L_aS:
s_waitcnt vmcnt(0)''')
    q0()
    A(f's_lshl_b32 s38, s{sW}, 8\nv_add_u32 v11, s38, v{vL4}\nL_aM:')
    nxq()
    for t in range(16):
        qk1(t,0); qk2(t); S=S0+16*(t&1)
        if t==0: A(f'v_mov_b32 v12, v{S}')
        for i in range(8): A(f'v_max3_f32 v12, v12, v{S+2*i}, v{S+2*i+1}')
    A(f'''ds_write_b32 v11, v12 offset:{MX}
v_add_u32 v11, 1024, v11
s_add_u32 s{sT}, s{sT}, 1
s_cmp_lt_u32 s{sT}, 4
s_cbranch_scc1 L_aM
s_waitcnt vmcnt(0) lgkmcnt(0)
s_barrier
s_mov_b32 s{sMode}, 1''')
    q0()
    A(f'''s_branch L_aR
L_aE:
s_waitcnt vmcnt(0)
s_barrier
v_mov_b32 v12, 1
s_lshl_b32 s31, s{sB}, 2
s_add_u32 s31, s31, {AAF}''')
    flag(A,12,31)
    prof(A,3,pr)
```

```python
from common import *
def W(n,k): return a(n,k) if n<256 else v(112+n-256,k)
def roleP(A,o):
    pr=o.get('prof')
    vS,vT,vX,vRA,vRB,vE,vBias,vF,vRE=4,5,6,7,8,9,10,11,12
    XF=16; ACC=40; ST=72; EA=88
    sQ,sCG,sM,sG,sL,sRS,sXG,sXL,sOut,sFl,sJ,sES,sEO,sSc,sEN,sXB=32,33,34,35,36,37,38,39,40,41,42,43,44,45,46,47
    A(f'''L_bulk:
s_lshl_b32 s97, s{sB}, 2
s_add_u32 s97, s97, s{sW}
s_lshl_b32 s97, s97, 8
s_add_u32 s97, s97, {PROF}''')
    prof(A,0,pr)
    l=A.lab()
    A(f's_cmp_lg_u32 s{sB}, 0\ns_cbranch_scc1 {l}_\ns_cmp_lg_u32 s{sW}, 0\ns_cbranch_scc1 {l}\ns_mov_b64 exec, 0xff\ns_mov_b32 s32, -1\ns_mov_b32 s33, -1\ns_mov_b32 s34, {MEMS+6144}\ns_mov_b32 s35, {MEMS+6144+8192}')
    for i in range(8): A(f's_memtime s[36:37]\ns_waitcnt lgkmcnt(0)\nbuffer_store_dwordx4 v[0:3], v1, {s(WS,4)}, s{34+(i&1)} offen sc1\ns_waitcnt vmcnt(0)\ns_memtime s[38:39]\ns_waitcnt lgkmcnt(0)\ns_sub_u32 s36, s38, s36\ns_min_u32 s{32+(i&1)}, s{32+(i&1)}, s36')
    A(f's_cmp_gt_u32 s32, s33\ns_cselect_b32 s36, 3, 1\ns_lshr_b32 s37, s3, 1\ns_and_b32 s37, s37, 2\ns_xor_b32 s36, s36, s37')
    if 'par' in o: A(f's_xor_b32 s36, s36, {2*o["par"]}')
    A(f'v_mov_b32 v4, s36\nv_mov_b32 v5, s32\nv_mov_b32 v6, s33\nv_mov_b32 v7, s3\ns_mov_b64 exec, 1\nbuffer_store_dword{"x4 v[4:7]" if pr else " v4"}, off, {s(DB,4)}, 0 offset:136 sc1\ns_mov_b64 exec, -1\n{l}:\ns_barrier\n{l}_:')
    A(f'''s_and_b32 s{sQ}, s{sB}, 3
s_lshr_b32 s{sCG}, s{sB}, 2
s_lshr_b32 s{sM}, s{sCG}, 4''')
    srd(A,WA,7,5242880)
    for m in(1,2):
        l=A.lab(); A(f's_cmp_lg_u32 s{sM}, {m}\ns_cbranch_scc1 {l}\ns_mov_b32 s{WA}, s{ptr(7+m)}\ns_mov_b32 s{WA+1}, s{ptr(7+m)+1}\n{l}:')
    A(f'''v_and_b32 v2, 15, v0
v_lshrrev_b32 v3, 4, v0
v_mul_u32_u24 v{vX}, 1280, v2
v_lshl_add_u32 v{vX}, v3, 4, v{vX}
s_and_b32 s31, s{sW}, 1
s_lshr_b32 s48, s{sW}, 1
s_mul_i32 s{sXG}, s31, {16*1280}
s_mul_i32 s49, s48, 640
s_add_u32 s{sXG}, s{sXG}, s49
s_mul_i32 s49, s{sQ}, {32*1280}
s_add_u32 s{sXG}, s{sXG}, s49
s_mul_i32 s{sXL}, s31, 20480
s_mul_i32 s49, s48, 10240
s_add_u32 s{sXL}, s{sXL}, s49''')
    def xdma(i): dma(A,vX,XS,sXG,(i//10)*4*32*1280+(i%10)*64,sXL,(i//10)*40960+(i%10)*1024)
    for i in range(20): xdma(i)
    A(f'''v_lshrrev_b32 v{vS}, 3, v0
v_lshlrev_b32 v{vS}, 13, v{vS}
v_and_b32 v13, 7, v0
v_lshl_add_u32 v{vS}, v13, 4, v{vS}
s_and_b32 s{sG}, s{sCG}, 15
s_lshl_b32 s{sG}, s{sG}, 2
s_add_u32 s{sG}, s{sG}, s{sW}
s_lshl_b32 s{sOut}, s{sG}, 12
s_lshr_b32 s{sFl}, s{sG}, 1
s_lshl_b32 s{sFl}, s{sFl}, 5
s_lshl_b32 s{sG}, s{sG}, 7
s_mul_i32 s{sL}, s{sW}, 20480
s_add_u32 s{sL}, s{sL}, 81920
v_lshrrev_b32 v13, 2, v2
v_lshl_add_u32 v13, v3, 3, v13
v_and_b32 v14, 3, v0
v_lshlrev_b32 v14, 3, v14
v_add_u32 v14, s{sL}, v14
v_lshl_add_u32 v{vT}, v13, 7, v14
v_lshl_add_u32 v15, v13, 5, v14
s_lshl_b32 s49, s{sM}, 24
s_add_u32 s{sOut}, s{sOut}, s49
s_lshl_b32 s49, s{sQ}, 18
s_add_u32 s{sOut}, s{sOut}, s49
s_add_u32 s{sOut}, s{sOut}, {QX}
s_lshl_b32 s49, s{sM}, 3
s_add_u32 s{sFl}, s{sFl}, s49
s_and_b32 s49, s{sW}, 1
s_lshl_b32 s49, s49, 2
s_add_u32 s{sFl}, s{sFl}, s49
s_add_u32 s{sFl}, s{sFl}, s{sQ}
s_lshl_b32 s{sFl}, s{sFl}, 2''')
    lk,lv,lg,le=A.lab(),A.lab(),A.lab(),A.lab()
    SCA=0x3ea52b5c
    A(f'''v_mov_b32 v{vBias}, 0
s_mov_b32 s{sSc}, 1.0
s_mov_b32 s50, 0x7ff00000
s_cmp_ge_u32 s{sCG}, 44
s_cbranch_scc1 {lg}
s_cmp_ge_u32 s{sCG}, 42
s_cbranch_scc1 {lv}
s_cmp_ge_u32 s{sCG}, 40
s_cbranch_scc1 {lk}''')
    srd(A,WB,1,819200)
    A(f'''s_mov_b32 s{sRS}, 1280
s_lshl_b32 s51, s{sCG}, 5
s_mov_b32 s{sSc}, {SCA}
s_mov_b32 s{sES}, {16*1280}
s_add_u32 s{sEO}, s51, {AQ}
v_mul_u32_u24 v{vE}, 1280, v2
v_lshl_add_u32 v{vE}, v3, 3, v{vE}
s_mov_b32 s{sEN}, 0
s_branch {le}
{lk}:''')
    srd(A,WB,2,25600)
    A(f'''s_mov_b32 s{sRS}, 40
s_and_b32 s51, s{sCG}, 1
s_lshl_b32 s51, s51, 5
s_mov_b32 s{sES}, 640
s_add_u32 s{sEO}, s51, {AK}
v_mul_u32_u24 v{vE}, 40, v2
v_lshlrev_b32 v13, 3, v3
v_add_u32 v{vE}, v{vE}, v13
v_add_u32 v13, s51, v13
v_cmp_gt_u32 vcc, 40, v13
v_mov_b32 v13, s50
v_cndmask_b32 v{vE}, v13, v{vE}, vcc
s_mov_b32 s{sEN}, 0
s_branch {le}
{lv}:''')
    srd(A,WB,3,25600)
    A(f'''s_mov_b32 s{sRS}, 40
s_and_b32 s51, s{sCG}, 1
s_lshl_b32 s52, s51, 4
s_lshl_b32 s51, s51, 5
s_mov_b32 s{sES}, {1024 if o.get('av',0) else 32}
s_mov_b32 s{sEO}, {AV2 if o.get('av',0) else AVT}
v_add_u32 v13, s52, v2
v_lshlrev_b32 v{vE}, {5 if o.get('av',0) else 12}, v13
v_lshl_add_u32 v{vE}, v3, 3, v{vE}
v_cmp_gt_u32 vcc, 20, v13
v_mov_b32 v13, s50
v_cndmask_b32 v{vE}, v13, v{vE}, vcc
s_mov_b32 s{sEN}, 1
s_branch {le}
{lg}:''')
    srd(A,WB,12,1280)
    A(f'''s_mov_b32 s{sRS}, 0
s_mov_b32 s51, 0
s_cmp_eq_u32 s{sCG}, 44
s_cselect_b32 s{sES}, 32, {1024 if o.get('av',0) else 32}
s_mov_b32 s{sEO}, {AV2+20*32 if o.get('av',0) else AVT+20*4096}
s_cselect_b32 s{sEO}, {AVT+21*4096}, s{sEO}
s_cselect_b32 s{sSc}, 1.0, 0
s_cselect_b32 s52, 0, 1.0
v_mov_b32 v{vBias}, s52
s_cmp_le_u32 s{sCG}, 45
s_cselect_b32 s52, 1, 0
v_lshlrev_b32 v{vE}, 3, v3
v_cmp_gt_u32 vcc, s52, v2
v_mov_b32 v13, s50
v_cndmask_b32 v{vE}, v13, v{vE}, vcc
s_mov_b32 s{sEN}, 1
{le}:
v_lshrrev_b32 v13, 1, v0
v_mul_lo_u32 v13, v13, s{sRS}
v_and_b32 v14, 1, v0
v_lshl_add_u32 v13, v14, 4, v13
s_lshl_b32 s{sRS}, s{sRS}, 5''')
    def issue(c):
        for i in range(4):
            if c<20: dma(A,vS,WA,sG,(32*c+8*i)*8192,sL,(c%5)*4096+i*1024)
            else:
                dma(A,13,WB,51,0,sL,(c%5)*4096+i*1024); A(f's_add_u32 s51, s51, s{sRS}')
    for c in range(5): issue(c)
    for c in range(25):
        A(f's_waitcnt vmcnt({4*min(4,24-c)})')
        for n in range(4):
            for mm in range(2):
                if c<20: A(f'ds_read_b64_tr_b16 {W((n*20+c)*4+2*mm,2)}, v{vT} offset:{(c%5)*4096+mm*512+n*32}')
                else: A(f'ds_read_b64_tr_b16 {W(320+((c-20)*4+n)*4+2*mm,2)}, v15 offset:{(c%5)*4096+n*1024+mm*128}')
        A('s_waitcnt lgkmcnt(0)')
        if c+5<25: issue(c+5)
    l=A.lab()
    A(f's_cmp_lt_u32 s{sCG}, 44\ns_cbranch_scc1 {l}\nv_lshlrev_b32 v13, 4, v3')
    for k in range(20): A(f'buffer_load_dwordx4 {W(320+4*k,4)}, v13, {s(WB,4)}, 0 offen offset:{64*k}')
    A(f'{l}:')
    wait_dbg(A,128,4,vt=13)
    A(f'''v_mov_b32 v{vRA}, v1
v_add_u32 v{vRB}, 40960, v1
s_mul_i32 s49, s{sW}, 20480
v_add_u32 v{vRE}, s49, v1
s_lshr_b32 s49, s{sW}, 1
s_lshl_b32 s49, s49, 2
s_add_u32 s49, s49, s{sQ}
s_lshl_b32 s49, s49, 1
s_and_b32 s52, s{sW}, 1
s_add_u32 s49, s49, s52
s_mul_i32 s49, s49, s{sES}
s_add_u32 s{sEO}, s{sEO}, s49
s_lshl_b32 s{sES}, s{sES}, 4
s_mov_b32 s{sJ}, 0
s_mov_b32 s{sXB}, 81920
v_mov_b32 v{vF}, s{sQ}''')
    prof(A,1,pr)
    A(f's_cmp_eq_u32 s{sM}, 2\ns_cbranch_scc1 L_pN')
    for var in 'TN':
        A(f'L_p{var}:\ns_barrier')
        A(f's_add_u32 s{sXG}, s{sXG}, {8*32*1280}\ns_add_u32 s{sXL}, s{sXL}, s{sXB}')
        for sg in range(2):
            vr=(vRA,vRB)[sg]
            def rd(k):
                for tt in range(2): A(f'ds_read_b128 {v(XF+(k%3)*8+tt*4,4)}, v{vr} offset:{(tt*20+k)*1024}')
            rd(0); rd(1)
            for k in range(20):
                if k+2<20: rd(k+2)
                if sg==0: xdma(k)
                A(f's_waitcnt lgkmcnt({2*min(2,19-k)})')
                for n in range(4):
                    for tt in range(2):
                        d=v(ACC+(n*2+tt)*4,4); x=v(XF+(k%3)*8+tt*4,4); w=W((n*20+k)*4,4)
                        A(f'v_mfma_f32_16x16x32_bf16 {d}, {w if var=="T" else x}, {x if var=="T" else w}, {d if k else 0}')
            A(f's_waitcnt vmcnt({20 if sg==0 else 0})'); flag(A,vF,sFl)
            A(f'v_add_u32 v{vF}, 4, v{vF}')
            for wl in range(2):
                for t in range(2):
                    for h in range(2):
                        n,tt=(2*wl+h,t) if var=='T' else (2*wl+t,h)
                        b=ACC+(n*2+tt)*4; d=ST+(wl*2+t)*4+2*h
                        A(f'v_cvt_pk_bf16_f32 v{d}, v{b}, v{b+1}\nv_cvt_pk_bf16_f32 v{d+1}, v{b+2}, v{b+3}')
                    A(f'buffer_store_dwordx4 {v(ST+(wl*2+t)*4,4)}, v1, {s(WS,4)}, s{sOut} offen offset:{(wl*2+t)*1024} sc1')
            A(f's_add_u32 s{sOut}, s{sOut}, {4<<18}')
        ln,lx=A.lab(),A.lab()
        A(f's_cmp_lg_u32 s{sEN}, 0\ns_cbranch_scc1 {ln}')
        for ev in 'TN':
            def rd(k): A(f'ds_read_b128 {v(XF+(k%6)*4,4)}, v{vRE} offset:{k*1024}')
            for k in range(5): rd(k)
            for k in range(20):
                if k+5<20: rd(k+5)
                A(f's_waitcnt lgkmcnt({min(5,19-k)})')
                d=v(EA,4); x=v(XF+(k%6)*4,4); w=W(320+4*k,4)
                A(f'v_mfma_f32_16x16x32_bf16 {d}, {w if ev=="T" else x}, {x if ev=="T" else w}, {d if k else 0}')
            A(f's_branch {lx}\n{ln}:' if ev=='T' else f'{lx}:')
        for r in range(4): A(f'v_fma_f32 v{EA+4+r}, v{EA+r}, s{sSc}, v{vBias}')
        A(f'''v_cvt_pk_bf16_f32 v{EA+4}, v{EA+4}, v{EA+5}
v_cvt_pk_bf16_f32 v{EA+5}, v{EA+6}, v{EA+7}
buffer_store_dwordx2 {v(EA+4,2)}, v{vE}, {s(WS,4)}, s{sEO} offen sc1
s_add_u32 s{sEO}, s{sEO}, s{sES}
v_add_u32 v{vRA}, s{sXB}, v{vRA}
v_add_u32 v{vRB}, s{sXB}, v{vRB}
v_add_u32 v{vRE}, s{sXB}, v{vRE}
s_sub_u32 s{sXB}, 0, s{sXB}
s_add_u32 s{sJ}, s{sJ}, 1
s_cmp_lt_u32 s{sJ}, 8
s_cbranch_scc1 L_p{var}''')
        if var=='T': A('s_branch L_pE')
    A('L_pE:\ns_waitcnt vmcnt(0)'); flag(A,vF,sFl)
    A(f's_barrier\ns_lshl_b32 s31, s{sB}, 2\ns_add_u32 s31, s31, {APF}'); flag(A,vF,31)
    prof(A,2,pr)
```

```python
from common import *
def roleT(A,o):
    pr=o.get('prof'); ws=s(WS,4)
    A(f's_cmp_ge_u32 s{sB}, 32\ns_cbranch_scc1 L_t2')
    Q,K,V,KMr,VMr,S,O,P,G=16,48,80,112,128,136,160,224,240
    vRF,vG,vOB=4,5,6
    sS,sQ,sKM,sVM,sG,sOB,sRFo,sTF,sSc=32,33,34,35,36,37,38,39,40
    A(f'''v_and_b32 v2, 15, v0
v_lshrrev_b32 v3, 4, v0
v_and_b32 v{vRF}, 1, v0
v_lshl_add_u32 v{vRF}, v{vRF}, 4, 12
v_mov_b32 v7, 0x3f80
v_and_b32 v8, 2, v0
v_cmp_eq_u32 vcc, 0, v8
v_cndmask_b32 v7, 1.0, v7, vcc
v_lshrrev_b32 v8, 2, v2
v_cmp_eq_u32 vcc, v8, v3
v_cndmask_b32 v244, 0, v7, vcc
v_mov_b32 v245, 0
v_mov_b32 v246, 0
v_mov_b32 v247, v244
v_lshlrev_b32 v{vG}, 1, v2
v_lshrrev_b32 v7, 2, v2
v_lshlrev_b32 v{vOB}, 15, v7
v_lshl_add_u32 v{vOB}, v3, 6, v{vOB}
v_and_b32 v7, 3, v0
v_lshl_add_u32 v{vOB}, v7, 4, v{vOB}
v_lshlrev_b32 v3, 2, v3
v_mov_b32 v8, 0xff7fffff
v_mov_b32 v{P+2}, 0
v_mov_b32 v{P+3}, 0
s_mov_b32 s{sS}, s{sW}
s_lshl_b32 s31, s{sW}, 5
s_add_u32 s31, s31, s{sB}
s_lshl_b32 s{sQ}, s31, 13
s_add_u32 s{sQ}, s{sQ}, {QX}
s_lshl_b32 s{sKM}, s31, 11
s_add_u32 s{sKM}, s{sKM}, {KM}
s_lshl_b32 s{sVM}, s31, 11
s_add_u32 s{sVM}, s{sVM}, {VM}
s_lshl_b32 s{sTF}, s31, 2
s_add_u32 s{sTF}, s{sTF}, {T1F}
s_lshl_b32 s{sG}, s{sW}, 6
s_add_u32 s{sG}, s{sG}, {AVT+21*4096}
s_lshl_b32 s{sOB}, s{sW}, 18
s_lshl_b32 s31, s{sB}, 10
s_add_u32 s{sOB}, s{sOB}, s31
s_add_u32 s{sOB}, s{sOB}, {OB}
s_lshl_b32 s{sRFo}, s{sB}, 7
s_add_u32 s{sRFo}, s{sRFo}, {RF}
s_mov_b32 s{sSc}, 0x3e0293ee''')
    for r in range(4): A(f'v_add_u32 v7, {r}, v3\nv_cmp_le_u32 s[{42+2*r}:{43+2*r}], v7, v2')
    for t in range(2): A(f'v_mov_b32 v{P+8+4*t+1}, 0\nv_mov_b32 v{P+8+4*t+2}, 0')
    A('L_t1:')
    for m,R in((0,Q),(1,K),(2,V)):
        for h in range(2):
            A(f's_add_u32 s31, s{sQ}, {(m<<24)+4096*h}')
            for i in range(4): A(f'buffer_load_dwordx4 {v(R+16*h+4*i,4)}, v1, {ws}, s31 offen offset:{1024*i}')
    for t in range(2): A(f'buffer_load_ushort v{G+t}, v{vG}, {ws}, s{sG} offen offset:{32*t}')
    A('s_waitcnt vmcnt(10)')
    mf='v_mfma_f32_16x16x32_bf16'
    for w in range(4):
        for n,(kt,tt) in enumerate(((0,0),(0,1),(1,1))):
            d=v(S+4*n,4); A(f'{mf} {d}, {v(K+8*w+4*kt,4)}, {v(Q+8*w+4*tt,4)}, {d if w else 0}')
    wait_flags(A,vRF,f's{sRFo}',f's{sS}',7,slp=2)
    for w in range(2): A(f'buffer_load_dwordx4 {v(248+4*w,4)}, v1, {ws}, s{sKM} offen offset:{1024*w} sc1')
    for w in range(2): A(f'buffer_load_dwordx4 {v(VMr+4*w,4)}, v1, {ws}, s{sVM} offen offset:{1024*w} sc1')
    for n in(0,2):
        for r in range(4): A(f'v_cndmask_b32 v{S+4*n+r}, v8, v{S+4*n+r}, s[{42+2*r}:{43+2*r}]')
    for t in range(2): A(f'v_lshlrev_b32 v{G+t}, 16, v{G+t}\nv_mul_f32 v{G+t}, 0x3fb8aa3b, v{G+t}\nv_exp_f32 v{G+t}, v{G+t}')
    A(f'''v_max3_f32 v10, v{S}, v{S+1}, v{S+2}
v_max3_f32 v11, v{S+4}, v{S+5}, v{S+6}
v_max_f32 v10, v10, v{S+3}
v_max3_f32 v11, v11, v{S+7}, v{S+8}
v_add_f32 v{G}, 1.0, v{G}
v_max3_f32 v11, v11, v{S+9}, v{S+10}
v_add_f32 v{G+1}, 1.0, v{G+1}
v_max_f32 v11, v11, v{S+11}''')
    A('s_waitcnt vmcnt(2)')
    for i in range(8): A(f'v_mfma_f32_16x16x16_bf16 {v(O+4*i,4)}, {v(248+2*(i>>1),2)}, {v(244+2*(i&1),2)}, 0')
    for i in range(16): A(f'v_cvt_pk_bf16_f32 v{KMr+i}, v{O+2*i}, v{O+2*i+1}')
    for w in range(4):
        for t in range(2):
            d=v(S+12+4*t,4); A(f'{mf} {d}, {v(KMr+4*w,4)}, {v(Q+8*w+4*t,4)}, {d if w else 0}')
    def xred(op):
        for sw in('16','32'):
            for t in range(2): A(f'v_mov_b32 v{12+t}, v{10+t}')
            for t in range(2): A(f'v_permlane{sw}_swap_b32 v{10+t}, v{12+t}')
            for t in range(2): A(f'{op} v{10+t}, v{10+t}, v{12+t}')
    for t in range(2): A(f'v_max3_f32 v{10+t}, v{10+t}, v{S+12+4*t}, v{S+14+4*t}')
    xred('v_max_f32')
    for t in range(2): A(f'v_mul_f32 v{10+t}, s{sSc}, v{10+t}')
    L=[[S+i for i in range(4)]+[S+12,S+14],[S+4+i for i in range(8)]+[S+16,S+18]]
    for t in range(2):
        for x in L[t]: A(f'v_fma_f32 v{x}, v{x}, s{sSc}, -v{10+t}')
    for t in range(2):
        for x in L[t]: A(f'v_exp_f32 v{x}, v{x}')
    for i in range(2): A(f'v_cvt_pk_bf16_f32 v{P+i}, v{S+2*i}, v{S+2*i+1}')
    for i in range(4): A(f'v_cvt_pk_bf16_f32 v{P+4+i}, v{S+4+2*i}, v{S+5+2*i}')
    for t in range(2):
        for j in(0,3): A(f'v_cvt_pk_bf16_f32 v{P+8+4*t+j}, v{S+12+4*t}, v{S+14+4*t}')
    for t in range(2):
        for i in range(8): A(f'{mf} {v(O+32*t+4*i,4)}, {v(V+4*i,4)}, {v(P+4*t,4)}, 0')
        A(f'v_add_f32 v{10+t}, v{L[t][0]}, v{L[t][1]}')
        for x in L[t][2:]: A(f'v_add_f32 v{10+t}, v{10+t}, v{x}')
    A('s_waitcnt vmcnt(0)')
    for t in range(2):
        for i in range(8):
            d=v(O+32*t+4*i,4); A(f'v_mfma_f32_16x16x16_bf16 {d}, {v(VMr+2*(i>>1),2)}, {v(P+8+4*t+2*(i&1),2)}, {d}')
        if t==0:
            xred('v_add_f32')
            for u in range(2): A(f'v_mul_f32 v{10+u}, v{10+u}, v{G+u}')
            for u in range(2): A(f'v_rcp_f32 v{10+u}, v{10+u}')
    for t in range(2):
        for w in range(4):
            b=O+32*t+8*w
            for i in range(8): A(f'v_mul_f32 v{b+i}, v{b+i}, v{10+t}')
            for i in range(4): A(f'v_cvt_pk_bf16_f32 v{b+i}, v{b+2*i}, v{b+2*i+1}')
            A(f'buffer_store_dwordx4 {v(b,4)}, v{vOB}, {ws}, s{sOB} offen offset:{256*w} sc1')
        A(f's_add_u32 s{sOB}, s{sOB}, {(1<<17) if t==0 else (7<<17)}')
    A(f'''s_add_u32 s{sS}, s{sS}, 4
v_mov_b32 v7, s{sS}
s_add_u32 s{sQ}, s{sQ}, {1<<20}
s_add_u32 s{sKM}, s{sKM}, {1<<18}
s_add_u32 s{sVM}, s{sVM}, {1<<18}
s_add_u32 s{sG}, s{sG}, 256
s_waitcnt vmcnt(0)''')
    flag(A,7,sTF)
    A(f's_cmp_lt_u32 s{sS}, 64\ns_cbranch_scc1 L_t1')
    prof(A,5,pr)
    A('s_endpgm')
    def W(n,k): return a(n,k) if n<256 else v(16+n-256,k)
    B,ACC,RD=56,204,212
    vD,vT,vT2,vOl,vAl,vSl,vJ,vF,vQ,vO,vA,vS=4,5,6,7,8,9,10,11,12,13,14,15
    sCB,sRep,sL,sG,sG2,sS0,sN,sO,sA=32,33,34,35,36,37,38,39,40
    A('L_t2:'); srd(A,WA,10,5242880); srd(A,WB,4,819200); srd(A,OS,13,2621440)
    A(f'''s_sub_u32 s31, s{sB}, 32
s_mul_i32 s{sRep}, s31, 3277
s_lshr_b32 s{sRep}, s{sRep}, 16
s_mul_i32 s{sCB}, s{sRep}, 20
s_sub_u32 s{sCB}, s31, s{sCB}
s_lshl_b32 s{sCB}, s{sCB}, 6
s_mul_i32 s{sL}, s{sW}, 40960
s_mul_i32 s{sG}, s{sW}, {1024*1280}
s_add_u32 s{sG}, s{sG}, s{sCB}
s_mul_i32 s{sG2}, s{sW}, {160*1280}
s_add_u32 s{sG2}, s{sG2}, s{sCB}
v_lshrrev_b32 v2, 2, v0
v_and_b32 v3, 3, v0
v_mul_u32_u24 v{vD}, 1280, v2
v_lshl_add_u32 v{vD}, v3, 4, v{vD}
v_add_u32 v{vT}, s{sL}, v1
v_lshrrev_b32 v{vQ}, 4, v0
v_lshl_add_u32 v{vT2}, v{vQ}, 8, v{vT}
v_and_b32 v{vJ}, 3, v2
v_lshlrev_b32 v{vOl}, 18, v{vJ}
v_lshl_add_u32 v{vOl}, v{vQ}, 6, v{vOl}
v_lshl_add_u32 v{vOl}, v3, 4, v{vOl}
v_lshl_add_u32 v2, v{vJ}, 5, v3
v_mul_u32_u24 v2, 1280, v2
v_lshl_add_u32 v{vAl}, v{vQ}, 4, v2
v_lshlrev_b32 v{vF}, 3, v0''')
    def issue(k):
        for i in range(2):
            if k<32: dma(A,vD,WA,sG,(32*k+16*i)*1280,sL,(k%20)*2048+i*1024)
            else: dma(A,vD,WB,sG2,(32*(k-32)+16*i)*1280,sL,(k%20)*2048+i*1024)
    for k in range(20): issue(k)
    for k in range(37):
        A(f's_waitcnt vmcnt({2*min(19,36-k)})')
        for ct in range(2):
            for mm in range(2):
                A(f'ds_read_b64_tr_b16 {W((2*k+ct)*4+2*mm,2)}, v{vT if k<32 else vT2} offset:{(k%20)*2048+ct*8+mm*(1024 if k<32 else 256)}')
        if k+20<37: A('s_waitcnt lgkmcnt(0)'); issue(k+20)
    A(f'''v_lshlrev_b32 v2, 2, v0
s_mov_b32 s31, {AAF}''')
    wait_flags(A,2,'s31',0,B,n=3,slp=4)
    A(f'''s_mov_b32 s{sS0}, 0
s_lshl_b32 s{sO}, s{sRep}, 15
s_lshl_b32 s31, s{sW}, 13
s_add_u32 s{sO}, s{sO}, s31
s_add_u32 s{sO}, s{sO}, {OB}
s_mul_i32 s{sA}, s{sRep}, 5120
s_add_u32 s{sCB}, s{sCB}, s{sA}
s_mul_i32 s31, s{sW}, 320
s_add_u32 s{sA}, s{sA}, s31
s_add_u32 s{sA}, s{sA}, {AO}
s_lshl_b32 s31, s{sW}, 11
v_add_u32 v{vT}, s31, v1
v_mov_b32 v{vD}, 0x7ff00000
v_mov_b32 v{vT2}, 0
s_mov_b32 s41, {T1F}
s_waitcnt lgkmcnt(0)
s_barrier''')
    PF=o.get('pf',0)
    if PF: A(f's_mov_b32 s{sG}, 0')
    prof(A,4,pr)
    A(f'''L_t2L:
s_cmp_lg_u32 s{sW}, 0
s_cbranch_scc1 L_t2B
L_t2P:
buffer_load_dwordx2 v[2:3], v{vF}, {ws}, s41 offen sc1
s_mov_b32 s{sN}, 0
s_waitcnt vmcnt(0)
v_min_u32 v2, v2, v3
v_max_u32 v2, v2, v{vQ}
v_subrev_u32 v2, s{sS0}, v2''')
    for j in range(4): A(f'v_cmp_ge_u32 vcc, {j}, v2\ns_cmp_eq_u64 vcc, 0\ns_addc_u32 s{sN}, s{sN}, 0')
    LB=o.get('lb',61)
    A(f's_add_u32 s31, s{sS0}, s{sN}\ns_cmp_eq_u32 s31, 64\ns_cbranch_scc1 L_t2G')
    if PF: A(f'''s_cmp_lg_u32 s{sS0}, {LB}
s_cbranch_scc1 L_t2Q
s_cmp_le_u32 s{sN}, s{sG}
s_cbranch_scc1 L_t2Q
s_or_b32 s{sN}, s{sN}, 0x100
s_branch L_t2G
L_t2Q:''')
    A(f's_min_u32 s31, s31, {LB}')
    if PF: A(f's_max_u32 s31, s31, s{sS0}')
    A(f's_sub_u32 s{sN}, s31, s{sS0}')
    A(f's_cmp_lg_u32 s{sN}, 0\ns_cbranch_scc1 L_t2G\ns_sleep 4'); spin(A,'L_t2P')
    A(f'''s_mov_b32 s{sN}, 1
L_t2G:
v_mov_b32 v2, s{sN}
ds_write_b32 v{vT2}, v2 offset:8192
s_waitcnt lgkmcnt(0)
L_t2B:
s_barrier
ds_read_b32 v2, v{vT2} offset:8192
s_add_u32 s31, s{sO}, 4096
s_waitcnt lgkmcnt(0)''')
    if PF: A(f'v_readfirstlane_b32 s{sG2}, v2\nv_and_b32 v2, 0xff, v2')
    A(f'''v_cmp_gt_u32 vcc, v2, v{vJ}
v_readfirstlane_b32 s{sN}, v2
v_cndmask_b32 v{vO}, v{vD}, v{vOl}, vcc
v_cndmask_b32 v{vA}, v{vD}, v{vAl}, vcc''')
    if PF: A(f'v_cmp_le_u32 vcc, s{sG}, v{vJ}\ns_nop 3\ns_mov_b64 exec, vcc')
    for k in range(37):
        if k<32: A(f'buffer_load_dwordx4 {v(B+4*k,4)}, v{vO}, {ws}, s{sO if k<16 else 31} offen offset:{256*(k%16)}')
        else: A(f'buffer_load_dwordx4 {v(B+4*k,4)}, v{vA}, {ws}, s{sA} offen offset:{64*(k-32)}')
    if PF: A(f'''s_mov_b64 exec, -1
s_cmp_lt_u32 s{sG2}, 0x100
s_cbranch_scc1 L_t2M
s_mov_b32 s{sG}, s{sN}
v_add_u32 v{vT2}, 4, v{vT2}
s_branch L_t2L
L_t2M:''')
    for k in range(37):
        A(f's_waitcnt vmcnt({36-k})')
        for ct in range(2):
            d=v(ACC+4*ct,4); A(f'{mf} {d}, {W((2*k+ct)*4,4)}, {v(B+4*k,4)}, {d if k else 0}')
    A(f'''s_lshl_b32 s31, s{sN}, 18
s_add_u32 s{sO}, s{sO}, s31
s_mul_i32 s31, s{sN}, {32*1280}
s_add_u32 s{sA}, s{sA}, s31
s_add_u32 s{sS0}, s{sS0}, s{sN}
ds_write_b128 v{vT}, {v(ACC,4)}
ds_write_b128 v{vT}, {v(ACC+4,4)} offset:1024
s_waitcnt lgkmcnt(0)
s_barrier
s_cmp_lg_u32 s{sW}, 1
s_cbranch_scc1 L_t2N''')
    for i in range(8): A(f'ds_read_b128 {v(RD+4*i,4)}, v1 offset:{1024*i}')
    A('s_waitcnt lgkmcnt(0)')
    for w in range(1,4):
        for i in range(8): A(f'v_add_f32 v{RD+i}, v{RD+i}, v{RD+8*w+i}')
    for i in range(4): A(f'v_cvt_pk_bf16_f32 v{RD+i}, v{RD+2*i}, v{RD+2*i+1}')
    A(f'''buffer_store_dwordx4 {v(RD,4)}, v{vA}, {s(OS,4)}, s{sCB} offen
s_add_u32 s{sCB}, s{sCB}, s31
L_t2N:
s_cmp_lt_u32 s{sS0}, 64
s_cbranch_scc1 L_t2L''')
    prof(A,5,pr)
```
